```python
import torch

def _softmax(x, axis=-1):
    return torch.softmax(x, dim=axis)
def _gelu(x):
    return torch.nn.functional.gelu(x, approximate="tanh")
def _silu(x):
    return torch.nn.functional.silu(x)
def _sigmoid(x):
    return torch.sigmoid(x)
def _layernorm(x, axis=-1, eps=1e-5):
    m = x.mean(dim=axis, keepdim=True)
    v = x.var(dim=axis, keepdim=True, unbiased=False)
    return (x - m) / torch.sqrt(v + eps)
def _scatter_add(tgt, idx, src, axis=0):
    return tgt.clone().index_add_(axis, idx, src)
def _segment_sum(src, seg, n):
    out = torch.zeros((n,) + src.shape[1:], dtype=src.dtype)
    return out.index_add_(0, seg, src)
def _pad(x, pw):
    flat = tuple(v for pair in reversed(pw) for v in pair)
    return torch.nn.functional.pad(x, flat)

kernel_name = 'concat_heads__gqa_block_cached__gqa_block_cached__near_ridge'

def setup_inputs():

    _w = (lambda a: (lambda t: t.to(torch.bfloat16) if t.is_floating_point() else t)(torch.as_tensor(a)))
    def _A_setup():
        B, Sq, D = 16, 48, 576
        Hq, Hkv, Sk, Dh = 32, 16, 48, 128
        assert Hq % Hkv == 0, (Hq, Hkv)
        return {
            "x": _w((lambda *s: torch.randn(*s, dtype=torch.bfloat16) * 0.8)(B, Sq, D)),
            "k_cache": _w((lambda *s: torch.randn(*s, dtype=torch.bfloat16) * 0.8)(B, Hkv, Sk, Dh)),
            "v_cache": _w((lambda *s: torch.randn(*s, dtype=torch.bfloat16) * 0.05)(B, Hkv, Sk, Dh)),
            "wq": _w((lambda *s: torch.randn(*s, dtype=torch.bfloat16) * 0.8)(D, Hq * Dh) * (D ** -0.5)),
            "wo": _w((lambda *s: torch.randn(*s, dtype=torch.bfloat16) * 0.05)(Hq * Dh, D) * ((Hq * Dh) ** -0.5)),
        }
    _A_in = _A_setup()

    def _B_setup():
        B, Sq, D = 16, 48, 576
        Hq, Hkv, Sk, Dh = 32, 16, 48, 128
        assert Hq % Hkv == 0, (Hq, Hkv)
        return {
            "x": _w((lambda *s: torch.randn(*s, dtype=torch.bfloat16) * 0.8)(B, Sq, D)),
            "k_cache": _w((lambda *s: torch.randn(*s, dtype=torch.bfloat16) * 0.8)(B, Hkv, Sk, Dh)),
            "v_cache": _w((lambda *s: torch.randn(*s, dtype=torch.bfloat16) * 0.05)(B, Hkv, Sk, Dh)),
            "wq": _w((lambda *s: torch.randn(*s, dtype=torch.bfloat16) * 0.8)(D, Hq * Dh) * (D ** -0.5)),
            "wo": _w((lambda *s: torch.randn(*s, dtype=torch.bfloat16) * 0.05)(Hq * Dh, D) * ((Hq * Dh) ** -0.5)),
        }
    _B_in = _B_setup()

    return {
        "A_x": _A_in["x"],
        "A_k_cache": _A_in["k_cache"],
        "A_v_cache": _A_in["v_cache"],
        "A_wq": _A_in["wq"],
        "A_wo": _A_in["wo"],
        "B_x": _B_in["x"],
        "B_k_cache": _B_in["k_cache"],
        "B_v_cache": _B_in["v_cache"],
        "B_wq": _B_in["wq"],
        "B_wo": _B_in["wo"],
    }

def reference(A_x, A_k_cache, A_v_cache, A_wq, A_wo, B_x, B_k_cache, B_v_cache, B_wq, B_wo):
    def _A_ref(x, k_cache, v_cache, wq, wo):
        B, Sq, D = x.shape
        Hq, Dh = 32, 128
        Hkv = k_cache.shape[1]
        rep = Hq // Hkv
        q = (lambda x, *d: x.permute(*d))((x @ wq).reshape(B, Sq, Hq, Dh), 0, 2, 1, 3)
        k = (lambda x, n, axis: torch.repeat_interleave(x, n, dim=axis))(k_cache, rep, axis=1)
        v = (lambda x, n, axis: torch.repeat_interleave(x, n, dim=axis))(v_cache, rep, axis=1)
        scores = torch.einsum("bhqd,bhkd->bhqk", q, k) * (Dh ** -0.5)
        p = _softmax(scores, axis=-1)
        o = torch.einsum("bhqk,bhkd->bhqd", p, v)
        return (lambda x, *d: x.permute(*d))(o, 0, 2, 1, 3).reshape(B, Sq, Hq * Dh) @ wo

    def _B_ref(x, k_cache, v_cache, wq, wo):
        B, Sq, D = x.shape
        Hq, Dh = 32, 128
        Hkv = k_cache.shape[1]
        rep = Hq // Hkv
        q = (lambda x, *d: x.permute(*d))((x @ wq).reshape(B, Sq, Hq, Dh), 0, 2, 1, 3)
        k = (lambda x, n, axis: torch.repeat_interleave(x, n, dim=axis))(k_cache, rep, axis=1)
        v = (lambda x, n, axis: torch.repeat_interleave(x, n, dim=axis))(v_cache, rep, axis=1)
        scores = torch.einsum("bhqd,bhkd->bhqk", q, k) * (Dh ** -0.5)
        p = _softmax(scores, axis=-1)
        o = torch.einsum("bhqk,bhkd->bhqd", p, v)
        return (lambda x, *d: x.permute(*d))(o, 0, 2, 1, 3).reshape(B, Sq, Hq * Dh) @ wo

    a = _A_ref(A_x, A_k_cache, A_v_cache, A_wq, A_wo)
    b = _B_ref(B_x, B_k_cache, B_v_cache, B_wq, B_wo)
    return torch.concatenate([a, b], axis=-1)
```

```python
import re
TRANS = ("v_exp_f32","v_log_f32","v_rcp_f32","v_rsq_f32","v_sqrt_f32","v_sin_f32","v_cos_f32")
def regs(tok):
    tok = tok.strip()
    tok = tok.lstrip('-')
    if tok.startswith('abs(') : tok = tok[4:-1]
    if tok.startswith('|'): tok = tok.strip('|')
    m = re.fullmatch(r'([vsa])(\d+)', tok)
    if m: return {(m.group(1), int(m.group(2)))}
    m = re.fullmatch(r'([vsa])\[(\d+):(\d+)\]', tok)
    if m: return {(m.group(1), i) for i in range(int(m.group(2)), int(m.group(3))+1)}
    if tok == 'vcc': return {('s','vcc')}
    if tok == 'm0': return {('s','m0')}
    if tok == 'exec': return {('s','exec')}
    return set()
class I:
    def __init__(self, text):
        self.text = text.strip()
        t = self.text.split(';')[0].strip()
        self.label = t.endswith(':')
        self.raw = t.startswith('.') or t == ''
        parts = t.split(None, 1)
        self.op = parts[0] if parts else ''
        ops = []
        if len(parts) > 1:
            ops = [o.strip() for o in parts[1].split(',')]
            last = ops[-1].split()
            self.mods = last[1:]
            ops[-1] = last[0]
        else: self.mods = []
        self.ops = ops
        op = self.op
        self.kind = 'other'; self.w = set(); self.r = set(); self.srcC = set(); self.srcAB = set()
        R = [regs(o) for o in ops]
        U = lambda l: set().union(*l) if l else set()
        if self.label or self.raw: self.kind = 'label'
        elif op.startswith('v_mfma'):
            self.kind = 'mfma'; self.w = R[0]; self.srcAB = R[1] | R[2]; self.srcC = R[3]; self.r = self.srcAB | self.srcC
            self.passes = 8 if '32x32' in op else 4
        elif op.startswith('ds_read'):
            self.kind = 'dsr'; self.w = R[0]; self.r = U(R[1:])
        elif op.startswith('ds_write'):
            self.kind = 'dsw'; self.r = U(R)
        elif op.startswith('buffer_load') or op.startswith('global_load'):
            if 'lds' in self.mods:
                self.kind = 'dma'; self.r = U(R) | {('s','m0')}
            else:
                self.kind = 'vld'; self.w = R[0]; self.r = U(R[1:])
        elif op.startswith('buffer_store') or op.startswith('global_store'):
            self.kind = 'vst'; self.r = U(R)
            self.data = R[0] if op.startswith('buffer') else R[1]
            self.wide = op.endswith('x4') or op.endswith('x3')
        elif op.startswith('buffer_atomic') or op.startswith('global_atomic'):
            self.kind = 'vst'; self.r = U(R); self.data=set(); self.wide=False
            if 'sc0' in self.mods: self.kind='vld'; self.w = R[0]
        elif op.startswith('buffer_'):
            self.kind = 'vmisc'
        elif op.startswith('v_permlane') and 'swap' in op:
            self.kind = 'valu'; self.w = U(R); self.r = U(R); self.perm = True
        elif op.startswith('v_'):
            self.kind = 'valu'; self.w = R[0]; self.r = U(R[1:])
            if op.startswith('v_fmac') or op.startswith('v_dot2c') or op.startswith('v_writelane'): self.r |= R[0]
            if op.startswith('v_cndmask') and len(ops) == 3: self.r |= {('s','vcc')}
            if op.startswith(('v_add_co','v_addc_co','v_sub_co')): self.w |= R[1]; self.r = U(R[2:])
        elif op.startswith('s_'):
            self.kind = 'salu'
            if op in ('s_nop','s_waitcnt','s_barrier','s_branch','s_endpgm','s_setprio','s_sleep') or op.startswith(('s_cbranch','s_cmp','s_bitcmp')):
                self.r = U(R)
            elif op.startswith(('s_load','s_memtime','s_memrealtime','s_buffer_load','s_atomic')):
                self.kind = 'smem'; self.w = R[0]; self.r = U(R[1:])
            else:
                self.w = R[0] if R else set(); self.r = U(R[1:])
                if 'saveexec' in op: self.w |= {('s','exec')}
        self.trans = op.split('_e32')[0].split('_e64')[0] in TRANS
        self.perm = op.startswith('v_permlane')
        self.dpp = 'dpp' in op
        self.rfl = op.startswith(('v_readfirstlane','v_readlane'))
    def states(self):
        if self.kind == 'label': return 0
        if self.op == 's_nop': return int(self.ops[0], 0) + 1
        return 1
def need(p, c):
    n = 0
    vw = {x for x in p.w if x[0] in 'va'}
    sw = {x for x in p.w if x[0] == 's'}
    if p.kind == 'valu':
        if c.kind == 'mfma' and vw & c.r: n = max(n, 2)
        if c.kind == 'mfma' and ('s','exec') in p.w: n = max(n, 4)
        if c.kind == 'valu':
            if p.trans and not c.trans and vw & c.r: n = max(n, 1)
            if c.perm and vw & c.r: n = max(n, 2)
            if c.dpp and vw & c.r: n = max(n, 2)
            if c.rfl and vw & c.r: n = max(n, 1)
            if sw & c.r: n = max(n, 2)
        if c.kind in ('vld','vst','dma') and sw & c.r: n = max(n, 5)
        if c.kind == 'salu' and sw & c.r: n = max(n, 2)
    if p.kind == 'mfma':
        P = p.passes
        big = {4:8, 8:12}[P]; ovl = {4:6, 8:10}[P]; war = {4:3, 8:7}[P]
        if c.kind == 'mfma':
            if p.w & c.srcAB: n = max(n, big)
            if p.w & c.srcC:
                if not (p.w == c.srcC and p.op == c.op): n = max(n, ovl)
            if p.w & c.w and not (p.w & c.srcC) and p.op != c.op: n = max(n, ovl)
        elif c.kind in ('valu','dsr','dsw','vld','vst','dma'):
            if p.w & (c.r | c.w): n = max(n, big)
            if c.kind == 'valu' and p.srcC & c.w: n = max(n, war)
    if p.kind == 'salu' and ('s','m0') in p.w and c.kind == 'dma': n = max(n, 1)
    if p.kind == 'vst' and p.wide and p.data & c.w: n = max(n, 2)
    return n
def fix(lines, track_vm=False, pre=None):
    out = list(pre) if pre else []
    npre = len(out)
    lq = []
    vq = []
    smem = False
    for t in lines:
        c = t if isinstance(t, I) else I(t)
        if c.kind == 'label':
            out.append(c); continue
        if c.op == 's_waitcnt':
            m = re.search(r'lgkmcnt\((\d+)\)', c.text)
            if m:
                k = int(m.group(1)); lq = lq[len(lq)-k:] if k < len(lq) and k > 0 else ([] if k == 0 else lq)
                if k == 0: smem = False
            m = re.search(r'vmcnt\((\d+)\)', c.text)
            if m:
                k = int(m.group(1)); vq = vq[len(vq)-k:] if k < len(vq) and k > 0 else ([] if k == 0 else vq)
        touched = c.r | c.w
        idx = -1
        for i, d in enumerate(lq):
            if d & touched: idx = i
        if idx >= 0:
            k = len(lq) - 1 - idx
            if smem: k = 0
            k = min(k, 15)
            out.append(I(f"s_waitcnt lgkmcnt({k})"))
            lq = lq[len(lq)-k:] if k > 0 else []
            if k == 0: smem = False
        if track_vm:
            idx = -1
            for i, d in enumerate(vq):
                if d & touched: idx = i
            if idx >= 0:
                k = min(len(vq) - 1 - idx, 63)
                out.append(I(f"s_waitcnt vmcnt({k})"))
                vq = vq[len(vq)-k:] if k > 0 else []
        dist = 0; req = 0
        for p in reversed(out):
            if dist >= 20: break
            n = need(p, c)
            if n - dist > req: req = n - dist
            dist += p.states()
        while req > 0:
            k = min(req, 16)
            out.append(I(f"s_nop {k-1}")); req -= k
        out.append(c)
        if c.kind == 'dsr': lq.append(set(c.w))
        elif c.kind == 'dsw': lq.append(set())
        elif c.kind == 'smem' and not c.op.startswith('s_memtime'): smem = True
        if c.kind == 'vld': vq.append(set(c.w))
        elif c.kind in ('vst','dma'): vq.append(set())
    return out[npre:]
def text(ins):
    return "\n".join((i.text if (i.label or i.raw) else "  " + i.text) for i in ins)
def interleave(main, fill, start=0, every=1, per=1):
    out = []; fi = 0
    for i, m in enumerate(main):
        out.append(m)
        if i >= start and (i - start) % every == 0:
            for _ in range(per):
                if fi < len(fill): out.append(fill[fi]); fi += 1
    out.extend(fill[fi:])
    return out

def cost(i):
    if i.kind == 'mfma': return 4
    if i.kind in ('dsr','dsw'): return 8
    if i.kind in ('vst','vld','dma'): return 8
    if i.trans or i.perm: return 9
    if i.op.startswith('v_cvt_pk'): return 5
    if i.kind == 'valu': return 4
    return 4
def lat(p, c):
    if p.kind == 'mfma':
        if c.kind == 'mfma' and (p.w & c.srcC) and not (p.w & c.srcAB): return 16
        if p.w & (c.r | c.w): return 36
        return 4
    if p.kind == 'dsr': return 130 if p.w & (c.r | c.w) else 8
    return cost(p)
def schedule(lines, pre=None, window=10**9, verbose=False, bias=None):
    bias = bias or {}
    ins = [x if isinstance(x, I) else I(x) for x in lines]
    n = len(ins)
    preds = [[] for _ in range(n)]; succs = [[] for _ in range(n)]
    for j in range(n):
        c = ins[j]
        for i in range(j):
            p = ins[i]
            dep = (p.w & c.r) or (p.w & c.w) or (p.r & c.w)
            if not dep and p.kind in ('vst',) and c.kind in ('vst',): dep = True
            if not dep and p.kind == 'dsw' and c.kind == 'dsw': dep = True
            if dep: preds[j].append(i); succs[i].append(j)
    prio = [0]*n
    for i in reversed(range(n)):
        prio[i] = cost(ins[i]) + max([ (lat(ins[i], ins[s]) if (ins[i].w & (ins[s].r|ins[s].w)) else 0) + prio[s] for s in succs[i]] + [0])
    done = [False]*n; tiss = [0]*n
    out = list(pre) if pre else []
    npre = len(out)
    t = 0; mf_free = 0; valu_ok = 0; lastvalu = False
    left = n
    npred = [len(p) for p in preds]
    ready = [i for i in range(n) if npred[i] == 0]
    lastk = None
    while left:
        best = None
        for i in ready:
            c = ins[i]
            st = t
            for p in preds[i]:
                if ins[p].w & (c.r | c.w): st = max(st, tiss[p] + lat(ins[p], c))
            st0 = st
            if c.kind == 'mfma': st = max(st, mf_free, t + (4 if lastvalu else 0))
            if c.kind == 'valu': st = max(st, valu_ok)
            dist = 0; req = 0
            for p in reversed(out):
                if dist >= 14: break
                k = need(p, c)
                if k - dist > req: req = k - dist
                dist += p.states()
            st = max(st, t + 4*req)
            late = max(0, st - t)
            if c.kind == 'mfma':
                cls = 0 if (late <= 4 and req == 0 and lastk != 'mfma') else 3
            elif c.kind in ('dsr','dsw','vst','salu'):
                cls = 1 if (lastk == 'mfma' and late == 0) else (4 if late == 0 else 5)
            else:
                cls = 2 if late <= (4 if lastk == 'mfma' else 0) else 5
            if cls >= 3 and late > 0: key = (5, late // 4, -prio[i], i)
            else: key = (cls, 0, -prio[i] - bias.get(i, 0), i)
            if best is None or key < best[0]: best = (key, i, st)
        _, i, st = best
        c = ins[i]
        tiss[i] = st
        t = st + cost(c)
        if c.kind == 'mfma': mf_free = st + 16; valu_ok = st + 8; lastvalu = False
        elif c.kind == 'valu': lastvalu = True
        else: lastvalu = False
        lastk = c.kind
        out.append(c); ready.remove(i); left -= 1
        for s in succs[i]:
            npred[s] -= 1
            if npred[s] == 0: ready.append(s)
    if verbose: print("schedule estimate cycles:", t)
    return out[npre:]
```

```python
KN = "concat_heads__gqa_block_cached__gqa_block_cached__near_ridge_kernel"
def kernel(name, body, vgpr=256, sgpr=102, accum=256):
    return f""".text
.globl {name}
.p2align 8
.type {name},@function
{name}:
{body}
s_endpgm
.section .rodata,"a"
.p2align 6
.amdhsa_kernel {name}
  .amdhsa_next_free_vgpr {vgpr}
  .amdhsa_next_free_sgpr {sgpr}
  .amdhsa_accum_offset {accum}
  .amdhsa_group_segment_fixed_size 0
  .amdhsa_kernarg_size 104
  .amdhsa_user_sgpr_count 2
  .amdhsa_user_sgpr_kernarg_segment_ptr 1
  .amdhsa_system_sgpr_workgroup_id_x 1
.end_amdhsa_kernel
"""
def file(launches, kernels):
    s = ""
    for (k, g, b, lds) in launches:
        s += f"; @launch kernel={k} grid=({g},1,1) block=({b},1,1) lds={lds}\n"
    s += '.amdgcn_target "amdgcn-amd-amdhsa--gfx950"\n'
    for k in kernels: s += k
    return s
```

```python
import sys
from asmlib import *
from mb_common import kernel as mkkernel
KN = "concat_heads__gqa_block_cached__gqa_block_cached__near_ridge_kernel"
WS = 268435456
class Cfg:
    prof = False
    ld_x = ""; ld_w = ""; ld_kv = ""; ld_wo = ""; ld_o = "sc1"
    FA = 1; FB = 3; F3 = 7
    sched = True; bias = 1000
    spin = 2000000
    prio = 1; slp = 2
    ssig = True; spoll = True; vpre = 4
    no_dma = False; nosync = False; no_ostore = False
cfg = Cfg()
QW = 33792; QS = 46080; LDS_Q_END = 138240; SLOT_C = 92160
KB = 112128; KPB = 13056; KP = 1088
VB = 138240; VPB = 12288
OR0 = 102400; OSL = 12288; OB = OR0 + OSL
MSL = 16896; UB = 4*MSL; USL = 8448
LOWN = 0
MPOS = [0,1,2,3,0,4,1,2,5,3,0,4,1,2,5,3]
MTHR = [0,0,0,0,1,2,2,3,4,4,5,6,7,8,9,10]
def nib(t): return sum(x << (4*i) for i, x in enumerate(t))
SYNC = 101376
PART = 256*49152; PART3 = PART + 1024*6144; FL1 = PART3 + 256*12288; FL2 = FL1 + 64*256; FL3 = FL2 + 256*128
SX, SK, SV, SWQ, SWO, SWS, SOUT, SDBG = 8, 12, 16, 20, 24, 28, 72, 76
def srd(r): return f"s[{r}:{r+3}]"
def v(a, n=1): return f"v{a}" if n == 1 else f"v[{a}:{a+n-1}]"
PV = 1
def flush(A, wait=True):
    if wait: A("s_waitcnt lgkmcnt(0)")
    A("s_sub_u32 s64, s64, s66"); A("s_lshl_b64 exec, 1, s70")
    A(f"v_mov_b32 v{PV}, s64"); A("s_mov_b64 exec, -1"); A("s_add_u32 s70, s70, 1")
def stamp(A, wait=True):
    if cfg.prof:
        flush(A, wait); A("s_memtime s[64:65]")
def bar(A):
    if cfg.prof: flush(A)
    A("s_barrier")
    if cfg.prof: A("s_memtime s[64:65]")
def L_(f, *a):
    L = []; f(L.append, *a); return L
def mk_srd(A, r, ptr, size):
    A(f"s_mov_b32 s{r}, s{ptr}"); A(f"s_mov_b32 s{r+1}, s{ptr+1}")
    A(f"s_mov_b32 s{r+2}, {size}"); A(f"s_mov_b32 s{r+3}, 0x20000")
def prologue(A):
    A("s_cmp_ge_u32 s2, 256"); A("s_cbranch_scc1 L_end")
    A("s_bfe_u32 s4, s2, 0x10002")
    A("s_mul_i32 s44, s4, 40"); A("s_add_u32 s46, s0, s44"); A("s_addc_u32 s47, s1, 0")
    A("s_load_dwordx8 s[32:39], s[46:47], 0")
    A("s_load_dwordx2 s[40:41], s[46:47], 32")
    A("s_load_dwordx4 s[80:83], s[0:1], 80")
    A("s_load_dwordx2 s[42:43], s[0:1], 96")
    if cfg.prof:
        A("s_memrealtime s[62:63]"); A("s_memtime s[66:67]"); A("s_memtime s[64:65]"); A("s_mov_b32 s70, 2"); A("s_mov_b64 s[96:97], 0")
    A("v_lshrrev_b32 v1, 6, v0")
    A("s_bfe_u32 s5, s2, 0x30003")
    A("v_readfirstlane_b32 s7, v1")
    A("s_lshr_b32 s71, s2, 6")
    A("s_and_b32 s3, s2, 3")
    A("s_lshl2_add_u32 s6, s3, s71")
    A("v_and_b32 v0, 63, v0")
    A("s_cmp_ge_u32 s7, 4"); A("s_cbranch_scc1 L_loader")
def dump_stamps(A):
    if not cfg.prof: return
    stamp(A)
    A(f"v_writelane_b32 v{PV}, s62, 0"); A(f"v_writelane_b32 v{PV}, s96, 61"); A(f"v_writelane_b32 v{PV}, s97, 62")
    A("s_memrealtime s[62:63]"); A("s_waitcnt lgkmcnt(0)"); A(f"v_writelane_b32 v{PV}, s62, 63")
    A("s_getreg_b32 s61, hwreg(HW_REG_XCC_ID)")
    A("s_lshl_b32 s61, s61, 8"); A("s_add_u32 s61, s61, s70")
    A(f"v_writelane_b32 v{PV}, s61, 1")
    A("v_lshlrev_b32 v3, 2, v0")
    A("s_lshl_b32 s61, s2, 11"); A("s_lshl_b32 s60, s7, 8"); A("s_add_u32 s61, s61, s60")
    A(f"s_add_u32 s61, s61, {WS-524288}")
    A(f"buffer_store_dword v{PV}, v3, s[28:31], s61 offen")
def poll(A, tag, voff, soff, off=0):
    if cfg.nosync: return
    A(f"s_mov_b32 s89, {cfg.spin}")
    A(f"L_poll{tag}:")
    A(f"buffer_load_dwordx2 v[30:31], v{voff}, {srd(SWS)}, s{soff} offen offset:{off} sc1")
    A("s_waitcnt vmcnt(0)")
    A("v_cmp_eq_u64 vcc, s[58:59], v[30:31]")
    A("s_sub_u32 s89, s89, 1")
    A("s_cbranch_scc1 L_pollx" + tag)
    A("s_nop 2")
    A("s_cmp_eq_u64 vcc, exec")
    A(f"s_cbranch_scc0 L_poll{tag}")
    A(f"L_pollx{tag}:")
def get_nonce_s(A, tag):
    A(f"s_mov_b32 s89, {cfg.spin}")
    A("v_mov_b32 v29, 0")
    A(f"L_non{tag}:")
    A(f"buffer_load_dwordx2 v[30:31], v29, {srd(SDBG)}, 0 offen sc1")
    A("s_waitcnt vmcnt(0)")
    A("v_readfirstlane_b32 s58, v30"); A("v_readfirstlane_b32 s59, v31")
    A("s_sub_u32 s89, s89, 1")
    A(f"s_cbranch_scc1 L_nonx{tag}")
    A("s_cmp_eq_u32 s58, 0")
    A(f"s_cbranch_scc1 L_non{tag}")
    A(f"L_nonx{tag}:")
def lds_wait(A, tag, vaddr, sneed):
    A(f"s_mov_b32 s89, {cfg.spin}")
    A(f"L_lw{tag}:")
    A(f"ds_read_b32 v30, v{vaddr}")
    A("s_waitcnt lgkmcnt(0)")
    A(f"v_cmp_gt_u32 vcc, {sneed}, v30")
    A("s_sub_u32 s89, s89, 1")
    A(f"s_cbranch_scc1 L_lwx{tag}")
    A(f"s_cbranch_vccz L_lwx{tag}")
    A(f"s_sleep {cfg.slp}")
    A(f"s_branch L_lw{tag}")
    A(f"L_lwx{tag}:")
def spoll(A, tag, soff, off, n):
    if cfg.nosync: return
    A(f"s_mov_b32 s89, {cfg.spin}")
    A(f"s_add_u32 s88, s{soff}, {off}")
    if n == 16: A("s_add_u32 s87, s88, 64")
    A(f"L_sp{tag}:")
    if n == 16:
        A("s_load_dwordx16 s[8:23], s[28:29], s88 glc"); A("s_load_dwordx16 s[32:47], s[28:29], s87 glc")
        regs = list(range(8, 24, 2)) + list(range(32, 48, 2))
    else:
        A("s_load_dwordx8 s[8:15], s[28:29], s88 glc"); regs = list(range(8, 16, 2))
    A("s_waitcnt lgkmcnt(0)")
    for r in regs: A(f"s_xor_b64 s[{r}:{r+1}], s[{r}:{r+1}], s[58:59]")
    for r in regs[1:]: A(f"s_or_b64 s[8:9], s[8:9], s[{r}:{r+1}]")
    A(f"s_cbranch_scc0 L_spx{tag}")
    A("s_sub_u32 s89, s89, 1")
    A(f"s_cbranch_scc0 L_sp{tag}")
    A(f"L_spx{tag}:")
def get_nonce_ss(A, tag):
    A(f"s_mov_b32 s89, {cfg.spin}")
    A(f"L_non{tag}:")
    A("s_load_dwordx2 s[58:59], s[82:83], 0 glc"); A("s_waitcnt lgkmcnt(0)")
    A("s_cmp_lg_u32 s58, 0"); A(f"s_cbranch_scc1 L_nonx{tag}")
    A("s_sub_u32 s89, s89, 1"); A(f"s_cbranch_scc0 L_non{tag}")
    A(f"L_nonx{tag}:")
STG = 64
def stage_index(A, j, dst):
    A(f"s_add_u32 s44, s48, {4*j}"); A("s_mul_i32 s45, s44, 86"); A("s_lshr_b32 s45, s45, 8")
    A("s_mul_i32 s46, s45, 3"); A("s_sub_u32 s44, s44, s46"); A("s_add_u32 s44, s44, s71"); A("s_add_u32 s44, s44, 1"); A("s_and_b32 s44, s44, 3")
    A("s_lshl_b32 s45, s45, 3"); A("s_lshr_b32 s45, 0x03010200, s45"); A("s_and_b32 s45, s45, 3"); A(f"s_lshl2_add_u32 s{dst}, s44, s45")
def stage_loads(A, j):
    A(f"s_mul_i32 s44, s{90+j}, 73728"); A("s_add_u32 s44, s44, s95")
    for i in range(16):
        if i % 4 == 0 and i: A(f"s_add_u32 s44, s44, {4*1152 if i != 8 else 28*1152}")
        A(f"buffer_load_dwordx4 {v(STG+64*j+4*i,4)}, v16, {srd(SWO)}, s44 offen offset:{(i%4)*1152} {cfg.ld_wo}")

def loader():
    L = []; A = L.append
    A("L_loader:")
    A("s_and_b32 s48, s7, 3")
    A("v_lshrrev_b32 v1, 5, v0"); A("v_lshlrev_b32 v1, 17, v1")
    A("v_and_b32 v2, 31, v0"); A("v_lshl_add_u32 v10, v2, 4, v1")
    A("s_and_b32 s57, s48, 1"); A("s_lshr_b32 s49, s48, 1")
    A("s_lshl_b32 s50, s6, 9"); A("s_lshl_b32 s44, s57, 15"); A("s_add_u32 s50, s50, s44")
    A("s_lshl_b32 s44, s49, 18"); A("s_add_u32 s50, s50, s44")
    A("s_mul_i32 s52, s48, 8448")
    A("v_lshrrev_b32 v1, 3, v0"); A("v_mul_u32_u24 v1, 1152, v1")
    A("v_and_b32 v2, 7, v0"); A("v_lshrrev_b32 v3, 4, v0"); A("v_xor_b32 v2, v2, v3")
    A("s_lshl_b32 s44, s57, 2"); A("v_xor_b32 v2, s44, v2")
    A("v_lshl_add_u32 v11, v2, 4, v1")
    A("v_xor_b32 v2, 4, v2"); A("v_lshl_add_u32 v12, v2, 4, v1")
    A("s_mul_i32 s51, s5, 110592"); A("s_mul_i32 s44, s48, 27648"); A("s_add_u32 s51, s51, s44")
    A("s_mul_i32 s53, s48, 3072"); A(f"s_add_u32 s53, s53, {QW}")
    A(f"s_mov_b32 s55, {SLOT_C}")
    A("s_mov_b32 s61, 0"); A("s_mov_b32 s88, 0")
    A("s_mov_b32 s22, 4718592"); A("s_mov_b32 s23, 0x20000"); A("s_mov_b32 s10, 884736"); A("s_mov_b32 s11, 0x20000")
    A("s_waitcnt lgkmcnt(0)")
    A("s_mov_b32 s20, s38"); A("s_mov_b32 s21, s39"); A("s_mov_b32 s8, s32"); A("s_mov_b32 s9, s33")
    stamp(A)
    A("L_lq:")
    A("s_mov_b32 s44, s50"); A("s_add_u32 m0, s55, s52")
    for jj in range(8):
        if jj:
            A(f"s_add_u32 m0, m0, 1056"); A(f"s_add_u32 s44, s44, {8192 if jj != 4 else 5*8192}")
        else: A("s_add_u32 s50, s50, 524288")
        A(f"buffer_load_dwordx4 v10, {srd(SWQ)}, s44 offen {cfg.ld_w} lds")
    A("s_add_u32 m0, s55, s53"); A("s_mov_b32 s45, s51")
    for jj in range(3):
        if jj:
            A("s_add_u32 m0, m0, 1024"); A(f"s_add_u32 s45, s45, {8*1152}")
        A(f"buffer_load_dwordx4 v{11 + (jj&1)}, {srd(SX)}, s45 offen {cfg.ld_x} lds")
    A("s_add_u32 s51, s51, 128")
    A(f"s_add_u32 s55, s55, {QS}"); A(f"s_cmp_eq_u32 s55, {LDS_Q_END}"); A("s_cselect_b32 s55, 0, s55")
    A("s_add_u32 s61, s61, 1")
    A("s_cmp_eq_u32 s88, 1"); A("s_cbranch_scc1 L_lq_next")
    A("s_cmp_lt_u32 s61, 2"); A("s_cbranch_scc1 L_lq")
    A("s_mov_b32 s88, 1")
    stamp(A)
    A("s_waitcnt vmcnt(11)"); bar(A)
    mk_srd(A, SK, 34, 3145728); mk_srd(A, SV, 36, 3145728); mk_srd(A, SWO, 40, 4718592)
    mk_srd(A, SWS, 42, WS); mk_srd(A, SOUT, 80, 1769472); mk_srd(A, SDBG, 82, 256)
    A("v_lshrrev_b32 v1, 4, v0"); A("v_and_b32 v2, 15, v0"); A("v_xor_b32 v3, v2, v1")
    A("v_lshlrev_b32 v3, 4, v3"); A("v_lshl_add_u32 v13, v1, 8, v3")
    A(f"s_mul_i32 s44, s49, {KPB}"); A(f"s_mul_i32 s45, s57, {6*KP}"); A("s_add_u32 s44, s44, s45"); A(f"s_add_u32 s44, s44, {KB}")
    A("v_add_u32 v13, s44, v13")
    A("v_mul_u32_u24 v16, 9216, v1"); A("v_lshl_add_u32 v16, v2, 4, v16")
    A("v_lshlrev_b32 v26, 3, v2")
    A("v_bfe_u32 v2, v0, 1, 3"); A("v_xor_b32 v2, v2, v1"); A("v_lshlrev_b32 v2, 5, v2")
    A("v_and_b32 v3, 1, v0"); A("v_lshl_add_u32 v2, v3, 4, v2"); A("v_lshl_add_u32 v14, v1, 8, v2")
    A("v_lshrrev_b32 v1, 3, v0"); A("v_mul_u32_u24 v1, 9216, v1"); A("v_and_b32 v2, 7, v0"); A("v_lshl_add_u32 v17, v2, 4, v1")
    A("s_lshl1_add_u32 s56, s5, s49"); A("s_lshl4_add_u32 s56, s56, s6"); A("s_mul_i32 s56, s56, 12288")
    A("s_mul_i32 s44, s57, 6144"); A("s_add_u32 s56, s56, s44")
    A("s_mov_b32 s84, s56")
    A(f"s_mul_i32 s85, s49, {VPB}"); A("s_add_u32 s85, s85, s44"); A(f"s_add_u32 s85, s85, {VB}")
    A("v_lshlrev_b32 v25, 4, v0")
    A("v_and_b32 v18, 3, v0"); A("v_lshlrev_b32 v18, 2, v18"); A(f"v_add_u32 v18, {SYNC+32}, v18")
    A("s_lshl_b32 s44, s48, 2"); A(f"s_add_u32 s44, s44, {SYNC}"); A("v_mov_b32 v19, s44"); A(f"v_mov_b32 v20, {SYNC+48}")
    A("s_mul_i32 s95, s3, 1179648"); A("s_lshl_b32 s44, s71, 8"); A("s_add_u32 s95, s95, s44")
    for j in range(3): stage_index(A, j, 90+j)
    A("s_and_b32 s44, s2, 7"); A("s_lshl3_add_u32 s44, s44, s5")
    A("s_lshl_b32 s93, s44, 8"); A(f"s_add_u32 s93, s93, {FL1}")
    A("s_mul_i32 s54, s44, 196608")
    A("s_branch L_lq")
    A("L_lq_next:")
    for n in range(3, 9):
        A(f"s_cmp_eq_u32 s61, {n}"); A(f"s_cbranch_scc0 L_k{n}")
        A(f"buffer_load_dwordx4 {v(40+4*(n-3),4)}, v25, {srd(SK)}, s56 offen offset:{(n-3)%4*1024} {cfg.ld_kv}")
        if n == 6: A("s_add_u32 s56, s56, 4096")
        A("s_waitcnt vmcnt(13)" if n > 3 else "s_waitcnt vmcnt(12)")
        A("s_branch L_lq_b")
        A(f"L_k{n}:")
    A("s_waitcnt vmcnt(11)")
    A("L_lq_b:")
    bar(A)
    A("s_cmp_lt_u32 s61, 9"); A("s_cbranch_scc1 L_lq")
    A("v_mov_b32 v29, 0"); A(f"buffer_load_dwordx2 v[32:33], v29, {srd(SDBG)}, 0 offen sc1")
    for jj in range(6): A(f"ds_write_b128 v13, {v(40+4*jj,4)} offset:{jj*KP}")
    A("v_min_u32 v2, 31, v0"); A("v_and_b32 v3, 20, v2"); A("v_lshlrev_b32 v2, 2, v2"); A(f"v_add_u32 v2, {SYNC}, v2")
    A("v_cmp_eq_u32 vcc, 20, v3"); A("v_cndmask_b32 v30, 0, 1, vcc"); A("ds_write_b32 v2, v30")
    A("s_waitcnt vmcnt(0)"); bar(A)
    A("s_mov_b32 m0, s85")
    for jj in range(6):
        if jj == 4: A("s_add_u32 m0, m0, 4096"); A("s_add_u32 s84, s84, 4096")
        if jj == 0: A("v_xor_b32 v15, 128, v14")
        A(f"buffer_load_dwordx4 v{14 + (jj&1)}, {srd(SV)}, s84 offen offset:{(jj%4)*1024} {cfg.ld_kv} lds")
    A("v_readfirstlane_b32 s58, v32"); A("v_readfirstlane_b32 s59, v33"); A("s_cmp_lg_u32 s58, 0"); A("s_cbranch_scc1 L_nok")
    get_nonce_s(A, "l")
    A("L_nok:")
    A(f"s_mov_b32 s98, {nib(MPOS) & 0xffffffff}"); A(f"s_mov_b32 s99, {nib(MPOS) >> 32}")
    A(f"s_mov_b32 s100, {nib(MTHR) & 0xffffffff}"); A(f"s_mov_b32 s101, {nib(MTHR) >> 32}")
    A("s_lshl_b32 s44, s48, 2"); A("s_add_u32 s44, s44, 16"); A("s_lshr_b64 s[98:99], s[98:99], s44"); A("s_lshr_b64 s[100:101], s[100:101], s44")
    A(f"v_mov_b32 v22, {SYNC+52}"); A(f"v_mov_b32 v23, {SYNC+56}"); A("v_mov_b32 v24, 1")
    A("s_lshl2_add_u32 s44, s71, s48"); A("s_mul_i32 s44, s44, 73728"); A("s_add_u32 s45, s44, s95")
    A(f"s_mul_i32 s46, s48, {MSL}"); A("s_mov_b32 m0, s46"); A("s_mul_i32 s46, s3, 1179648")
    A("s_waitcnt lgkmcnt(0)"); bar(A)
    def m_dma(first_hook=None):
        for i in range(16):
            if i: A("s_add_u32 m0, m0, 1056"); A(f"s_add_u32 s45, s45, {1152 if i != 8 else 25*1152}")
            if first_hook and i == cfg.vpre: first_hook()
            A(f"buffer_load_dwordx4 v16, {srd(SWO)}, s45 offen {cfg.ld_wo} lds")
    def vsig():
        A(f"s_waitcnt vmcnt({cfg.vpre})"); A("ds_write_b32 v19, v24 offset:96"); stamp(A)
    m_dma(vsig)
    A("s_add_u32 s45, s44, s46"); A("s_add_u32 s45, s45, 1024")
    A(f"s_mul_i32 s46, s48, {USL}"); A(f"s_add_u32 m0, s46, {UB}")
    for i in range(8):
        if i: A("s_add_u32 m0, m0, 1056"); A(f"s_add_u32 s45, s45, 1152")
        else: A("s_nop 0")
        A(f"buffer_load_dwordx4 v17, {srd(SWO)}, s45 offen {cfg.ld_wo} lds")
    A("s_add_u32 s60, s48, 4"); A("v_mov_b32 v31, s60"); A("s_waitcnt vmcnt(0)"); A("ds_write_b32 v19, v31")
    stamp(A)
    A("s_mov_b32 s61, 0")
    A("L_st:")
    A("s_and_b32 s60, s100, 15"); A("s_and_b32 s44, s98, 15"); A(f"s_mul_i32 s44, s44, {MSL}"); A("s_mov_b32 m0, s44")
    A("s_lshr_b64 s[98:99], s[98:99], 16"); A("s_lshr_b64 s[100:101], s[100:101], 16")
    A("s_mul_i32 s45, s90, 73728"); A("s_add_u32 s45, s45, s95")
    lds_wait(A, "m", 18, "s60")
    m_dma()
    stamp(A)
    A("s_add_u32 s60, s48, s61")
    A("s_cmp_eq_u32 s60, 0"); A("s_cbranch_scc0 L_n0")
    if cfg.spoll: spoll(A, "a", 93, 0, 16)
    else: poll(A, "a", 26, 93)
    A("ds_write_b32 v22, v24")
    A("L_n0:")
    A("s_cmp_eq_u32 s60, 6"); A("s_cbranch_scc0 L_n6")
    if cfg.spoll: spoll(A, "b", 93, 128, 16)
    else: poll(A, "b", 26, 93, 128)
    A("ds_write_b32 v23, v24")
    A("L_n6:")
    A("s_cmp_ge_u32 s60, 6"); A("s_cselect_b32 s44, 4, 0"); A("v_add_u32 v21, s44, v22")
    lds_wait(A, "fl", 21, 1)
    lds_wait(A, "o", 18, "s60")
    stamp(A)
    A("s_mul_i32 s44, s60, 52"); A("s_lshr_b32 s44, s44, 8"); A("s_mul_i32 s44, s44, 5"); A("s_sub_u32 s44, s60, s44")
    A(f"s_mul_i32 s44, s44, {OSL}"); A(f"s_add_u32 m0, s44, {OR0}")
    A(f"s_mul_i32 s44, s90, 12288"); A("s_add_u32 s44, s44, s54")
    for ii in range(12):
        if ii % 4 == 0 and ii: A("s_add_u32 m0, m0, 4096"); A("s_add_u32 s44, s44, 4096")
        A(f"buffer_load_dwordx4 v25, {srd(SWS)}, s44 offen offset:{(ii%4)*1024} {cfg.ld_o} lds")
    A("s_add_u32 s60, s60, 8"); A("v_mov_b32 v31, s60"); A("s_mov_b32 s90, s91"); A("s_mov_b32 s91, s92")
    A("s_waitcnt vmcnt(0)"); A("ds_write_b32 v19, v31")
    stamp(A)
    A("s_add_u32 s61, s61, 4"); A("s_cmp_lt_u32 s61, 12"); A("s_cbranch_scc1 L_st")
    A("s_setprio 3")
    A("s_mov_b32 s86, 0x3f80"); A("s_mov_b32 s85, 0x3f800000")
    A("s_lshl3_add_u32 s47, s4, s5")
    A("s_cmp_eq_u32 s48, 0"); A("s_cbranch_scc1 L_fin_u")
    A("s_sub_u32 s48, s48, 1")
    A("s_lshl2_add_u32 s44, s47, s71"); A("s_lshl2_add_u32 s44, s44, s3")
    A("s_lshl_b32 s51, s44, 7"); A(f"s_add_u32 s51, s51, {FL2}")
    A("s_mul_i32 s50, s44, 24576"); A("s_lshl_b32 s45, s48, 11"); A("s_add_u32 s50, s50, s45"); A(f"s_add_u32 s50, s50, {PART}")
    for i in range(3):
        A(f"s_add_u32 s46, s3, {i+1}"); A("s_and_b32 s46, s46, 3"); A("s_mul_i32 s46, s46, 6144"); A(f"s_add_u32 s{52+i}, s50, s46")
    A(f"s_add_u32 s45, s45, {LOWN}"); A("v_add_u32 v29, s45, v25")
    A("v_and_b32 v27, 3, v0"); A("v_lshlrev_b32 v27, 3, v27")
    A("v_and_b32 v2, 15, v0"); A("v_mul_u32_u24 v2, 2304, v2"); A("v_lshrrev_b32 v3, 4, v0"); A("v_lshl_add_u32 v28, v3, 3, v2")
    A("s_and_b32 s44, s3, 1"); A("s_lshl1_add_u32 s44, s5, s44"); A("s_mul_i32 s60, s44, 110592")
    A("s_mul_i32 s44, s48, 36864"); A("s_add_u32 s60, s60, s44")
    A("s_mul_i32 s44, s4, 1152"); A("s_add_u32 s60, s60, s44"); A("s_lshl_b32 s44, s71, 8"); A("s_add_u32 s60, s60, s44")
    A("s_lshr_b32 s44, s3, 1"); A("s_lshl_b32 s44, s44, 7"); A("s_add_u32 s60, s60, s44")
    lds_wait(A, "f", 20, 1)
    stamp(A)
    A("ds_read_b128 v[32:35], v29"); A("ds_read_b128 v[36:39], v29 offset:1024")
    if cfg.spoll: spoll(A, "f", 51, 0, 4)
    else: poll(A, "f", 27, 51)
    stamp(A)
    for i in range(3):
        A(f"buffer_load_dwordx4 {v(40+8*i,4)}, v25, {srd(SWS)}, s{52+i} offen sc1")
        A(f"buffer_load_dwordx4 {v(44+8*i,4)}, v25, {srd(SWS)}, s{52+i} offen offset:1024 sc1")
    A("s_waitcnt lgkmcnt(0)")
    for j in range(8):
        A(f"v_lshlrev_b32 v{64+2*j}, 16, v{32+j}"); A(f"v_and_b32 v{65+2*j}, 0xffff0000, v{32+j}")
    for i in range(3):
        A(f"s_waitcnt vmcnt({4-2*i})")
        for j in range(8):
            A(f"v_dot2_f32_bf16 v{64+2*j}, v{40+8*i+j}, s86, v{64+2*j}")
            A(f"v_dot2_f32_bf16 v{65+2*j}, v{40+8*i+j}, s85, v{65+2*j}")
    A("s_nop 2")
    for j in range(8): A(f"v_cvt_pk_bf16_f32 v{32+j}, v{64+2*j}, v{65+2*j}")
    for j in range(4): A(f"buffer_store_dwordx2 {v(32+2*j,2)}, v28, {srd(SOUT)}, s60 offen offset:{32*j}")
    A("s_branch L_fin4")
    A("L_fin_u:")
    A("s_lshl_b32 s51, s47, 9"); A(f"s_add_u32 s51, s51, {FL3}")
    A("s_mul_i32 s50, s47, 196608"); A("s_mul_i32 s44, s6, 768"); A("s_add_u32 s50, s50, s44"); A(f"s_add_u32 s50, s50, {PART3}")
    A("v_lshlrev_b32 v27, 3, v0")
    A("s_mul_i32 s44, s6, 48"); A("v_add_u32 v2, s44, v0")
    A("v_lshrrev_b32 v3, 6, v2")
    A("v_mul_u32_u24 v4, 86, v3"); A("v_lshrrev_b32 v4, 8, v4")
    A("v_mul_u32_u24 v5, 3, v4"); A("v_sub_u32 v5, v3, v5")
    A("v_and_b32 v6, 1, v4"); A("v_mul_u32_u24 v6, 48, v6"); A("v_lshl_add_u32 v6, v5, 4, v6")
    A("v_and_b32 v5, 15, v2"); A("v_add_u32 v6, v6, v5"); A("v_mul_u32_u24 v6, 2304, v6")
    A("v_lshrrev_b32 v4, 1, v4"); A("v_lshl_add_u32 v6, v4, 6, v6")
    A("v_bfe_u32 v5, v2, 4, 2"); A("v_lshl_add_u32 v28, v5, 3, v6")
    A("s_mul_i32 s60, s5, 221184"); A("s_mul_i32 s44, s4, 1152"); A("s_add_u32 s60, s60, s44"); A("s_add_u32 s60, s60, 1024")
    poll(A, "u", 27, 51)
    stamp(A)
    A("s_mov_b32 exec_hi, 0xffff")
    for i in range(16):
        A(f"buffer_load_dwordx4 {v(40+4*i,4)}, v25, {srd(SWS)}, s50 offen sc1")
        if i < 15: A("s_add_u32 s50, s50, 12288")
    A("s_waitcnt vmcnt(15)")
    for j in range(4):
        A(f"v_lshlrev_b32 v{32+2*j}, 16, v{40+j}"); A(f"v_and_b32 v{33+2*j}, 0xffff0000, v{40+j}")
    for i in range(1, 16):
        A(f"s_waitcnt vmcnt({15-i})")
        for j in range(4):
            A(f"v_dot2_f32_bf16 v{32+2*j}, v{40+4*i+j}, s86, v{32+2*j}")
            A(f"v_dot2_f32_bf16 v{33+2*j}, v{40+4*i+j}, s85, v{33+2*j}")
    A("s_nop 2")
    for j in range(4): A(f"v_cvt_pk_bf16_f32 v{40+j}, v{32+2*j}, v{33+2*j}")
    A(f"buffer_store_dwordx2 v[40:41], v28, {srd(SOUT)}, s60 offen")
    A(f"buffer_store_dwordx2 v[42:43], v28, {srd(SOUT)}, s60 offen offset:32")
    A("s_mov_b64 exec, -1")
    A("L_fin4:")
    if cfg.prof: A("s_waitcnt vmcnt(0)"); stamp(A)
    dump_stamps(A)
    A("s_branch L_end")
    if cfg.no_dma: L = [x for x in L if not (x.startswith('buffer_load_dwordx4') and (x.endswith('lds') or 's[24:27]' in x or 's[12:15]' in x))]
    return fix(L)

VA, VB0, VB1, VK0, VK1, VV, VOW, VOG, VM, VU, VO, VL16 = 2, 3, 4, 5, 6, 7, 15, 16, 17, 18, 19, 21
VRA, VDA, VR, VD = 29, 30, 31, 20
VN = 156; VML = 158
SET = {1: (32, 64), 0: (76, 108)}
ACC = 160
def acc(qt, dt): return ACC + qt*32 + dt*4
KF = 76
def q_reads(ks, st):
    a, b = SET[st]; R = []
    for qt in range(3): R.append(f"ds_read_b128 {v(b+4*qt,4)}, v{VB0+ks} offset:{qt*2048}")
    for dt in range(8):
        for half in range(2):
            R.append(f"ds_read_b64_tr_b16 {v(a+4*dt+2*half,2)}, v{VA} offset:{ks*16896+half*8448+dt*32}")
    return R[3:5] + R[0:3] + R[5:]
def q_mfma(st):
    a, b = SET[st]
    return [f"v_mfma_f32_16x16x32_bf16 {v(acc(qt,dt),4)}, {v(a+4*dt,4)}, {v(b+4*qt,4)}, {v(acc(qt,dt),4)}" for dt in range(8) for qt in range(3)]
def weave(M, gaps):
    out = []
    for i, m in enumerate(M):
        out.append(m)
        if i < len(gaps): out.extend(gaps[i])
    for g in gaps[len(M):]: out.extend(g)
    return out
P2 = {0: 32, 1: 68}
AC2 = 104; ACU = 160; PK = 184; PKU = 224
def a2(f, qt): return AC2 + (f*3+qt)*4 if f < 4 else ACU + ((f-4)*3+qt)*4
def w_reads(ks, st, own):
    a = P2[st]; R = []
    for f in range(6 if own else 4):
        for half in range(2):
            if f < 4: R.append(f"ds_read_b64_tr_b16 {v(a+4*f+2*half,2)}, v{VM} offset:{ks*8448+half*512+f*32}")
            else: R.append(f"ds_read_b64_tr_b16 {v(a+4*f+2*half,2)}, v{VU} offset:{(ks*4+half*2)*128+(f-4)*32}")
    B = [f"ds_read_b128 {v(a+24+4*qt,4)}, v{VO} offset:{qt*2048+ks*1024}" for qt in range(3)]
    return R[:2] + B + R[2:]
def w_mfma(st, own, first=False):
    a = P2[st]
    return [f"v_mfma_f32_16x16x32_bf16 {v(a2(f,qt),4)}, {v(a+4*f,4)}, {v(a+24+4*qt,4)}, {'0' if first else v(a2(f,qt),4)}"
            for f in range(6 if own else 4) for qt in range(3)]

def attention(lastq):
    L = []; bias = {}
    cur = [0]
    def A(x):
        bias[len(L)] = cur[0]; L.append(x)
    VQ, VP = 32, 124
    for x in lastq: A(x)
    for ks in range(4):
        for kt in range(3):
            for half in range(2):
                A(f"ds_read_b64 {v(KF+(kt*4+ks)*4+2*half,2)}, v{VK0+half} offset:{kt*4*KP+ks*64}")
    def qb(ks, qt): return ACC + qt*32 + ks*8
    def sp(i): return ACC + (i//4)*32 + (i%4)*8 + 4
    def S(kt, qt): return sp(qt*4 + kt)
    def PB(qt): return sp(qt*4 + 3)
    OODD = {0: 140, 1: KF, 2: KF+16}
    def O(dt, qt): return qb(dt//2, qt) if dt % 2 == 0 else OODD[qt] + (dt//2)*4
    m = [23, 24, 25]; t = [26, 27, 28]
    for qt in range(3):
        cur[0] = (2-qt)*cfg.bias
        for ks in range(4):
            r = qb(ks, qt)
            for j in range(4): A(f"v_cvt_pk_bf16_f32 v{r+j}, v{r+2*j}, v{r+2*j+1}")
        for ks in range(4):
            for kt in range(3):
                c = "0" if ks == 0 else v(S(kt,qt),4)
                A(f"v_mfma_f32_16x16x32_bf16 {v(S(kt,qt),4)}, {v(KF+(kt*4+ks)*4,4)}, {v(qb(ks,qt),4)}, {c}")
    vr = []; vregs = set()
    for dt in range(8):
        for x in (f"ds_read_b64_tr_b16 {v(VQ+4*dt,2)}, v{VV+dt}", f"ds_read_b64_tr_b16 {v(VQ+4*dt+2,2)}, v{VV+dt} offset:4096",
                  f"ds_read_b64_tr_b16 {v(VP+2*dt,2)}, v{VV+dt} offset:8192"):
            i = I(x); i.r = i.r | {('x','vl')}; vr.append(i); vregs |= i.w
    lr = I(f"ds_read_b32 v{VR}, v{VRA} offset:96"); lr.r = lr.r | {('v', S(0,0))}
    lc = I(f"v_cmp_eq_u32 vcc, 0, v{VR}")
    lb = I("s_cbranch_vccnz L_vls"); lb.text = "s_cbranch_vccnz L_vls\nL_vlg:"; lb.r = {('s','vcc')}; lb.w = {('x','vl')}
    kw = I(f"ds_write_b32 v{VDA}, v{VD} offset:48"); kw.r = kw.r | vregs | {('v', KF+i) for i in range(48)}; kw.w = {('x','kw')}
    kr = I(f"ds_read_b32 v{VR}, v{VRA} offset:64"); kr.r = kr.r | {('x','kw'), ('v', PB(0))}
    kc = I(f"v_cmp_eq_u32 vcc, 0, v{VR}")
    kb = I("s_cbranch_vccnz L_kvs"); kb.text = "s_cbranch_vccnz L_kvs\nL_kvg:"; kb.r = {('s','vcc')}; kb.w = {('x','bar2')}
    stores = {}
    for qt in range(3):
        cur[0] = (2-qt)*cfg.bias
        s = [S(kt,qt)+r for kt in range(3) for r in range(4)]
        M, T = m[qt], t[qt]
        A(f"v_max3_f32 v{M}, v{s[0]}, v{s[1]}, v{s[2]}"); A(f"v_max3_f32 v{T}, v{s[3]}, v{s[4]}, v{s[5]}")
        A(f"v_max3_f32 v{M}, v{M}, v{s[6]}, v{s[7]}"); A(f"v_max3_f32 v{T}, v{T}, v{s[8]}, v{s[9]}")
        A(f"v_max3_f32 v{M}, v{M}, v{s[10]}, v{s[11]}"); A(f"v_max_f32 v{M}, v{M}, v{T}")
        if qt == 0:
            A(lr); A(lc); A(lb)
            for x in vr: A(x)
            A(kw)
        for sw in ("v_permlane16_swap_b32", "v_permlane32_swap_b32"):
            A(f"v_mov_b32 v{T}, v{M}"); A(f"{sw} v{M}, v{T}"); A(f"v_max_f32 v{M}, v{M}, v{T}")
        A(f"v_mul_f32 v{M}, s51, v{M}")
        for x in s: A(f"v_fma_f32 v{x}, v{x}, s51, -v{M}")
        for x in s: A(f"v_exp_f32 v{x}, v{x}")
        A(f"v_add_f32 v{M}, v{s[0]}, v{s[1]}"); A(f"v_add_f32 v{T}, v{s[2]}, v{s[3]}")
        for i in range(4, 12, 2):
            A(f"v_add_f32 v{M}, v{M}, v{s[i]}"); A(f"v_add_f32 v{T}, v{T}, v{s[i+1]}")
        A(f"v_add_f32 v{M}, v{M}, v{T}")
        for sw in ("v_permlane16_swap_b32", "v_permlane32_swap_b32"):
            A(f"v_mov_b32 v{T}, v{M}"); A(f"{sw} v{M}, v{T}"); A(f"v_add_f32 v{M}, v{M}, v{T}")
        A(f"v_rcp_f32 v{M}, v{M}")
        for x in s: A(f"v_mul_f32 v{x}, v{x}, v{M}")
        for j in range(4): A(f"v_cvt_pk_bf16_f32 v{PB(qt)+j}, v{s[2*j]}, v{s[2*j+1]}")
        for j in range(2): A(f"v_cvt_pk_bf16_f32 v{S(2,qt)+j}, v{s[8+2*j]}, v{s[9+2*j]}")
        if qt == 0: A(kr); A(kc); A(kb)
        for dt in range(8):
            A(f"v_mfma_f32_16x16x32_bf16 {v(O(dt,qt),4)}, {v(VQ+4*dt,4)}, {v(PB(qt),4)}, 0")
        for dt in range(8):
            A(f"v_mfma_f32_16x16x16_bf16 {v(O(dt,qt),4)}, {v(VP+2*dt,2)}, {v(S(2,qt),2)}, {v(O(dt,qt),4)}")
        for ks in range(4):
            r = qb(ks, qt); k = O(2*ks+1, qt)
            A(f"v_cvt_pk_bf16_f32 v{r}, v{r}, v{r+1}"); A(f"v_cvt_pk_bf16_f32 v{r+1}, v{r+2}, v{r+3}")
            A(f"v_cvt_pk_bf16_f32 v{r+2}, v{k}, v{k+1}"); A(f"v_cvt_pk_bf16_f32 v{r+3}, v{k+2}, v{k+3}")
            w = I(f"ds_write_b128 v{VOW}, {v(r,4)} offset:{(ks>>1)*12288+qt*2048+(ks&1)*1024}"); w.r = w.r | {('x','bar2')}
            A(w)
            stores[qt, ks] = f"buffer_store_dwordx4 {v(r,4)}, v{VOG}, {srd(SWS)}, s{54+(ks>>1)*2+(qt>>1)} offen offset:{(qt&1)*2048+(ks&1)*1024} sc1"
    cur[0] = 5000
    order = [(0,0),(0,1),(0,2),(0,3),(1,0),(1,1),(2,0),(2,1)]
    late = [(1,2),(1,3),(2,2),(2,3)]
    if not cfg.no_ostore:
        for k in order: A(stores[k])
    if cfg.sched: L = schedule(L, verbose=True, bias=bias)
    return L, ([] if cfg.no_ostore else [stores[k] for k in late])

def compute():
    L = []; A = L.append
    A("s_and_b32 s44, s7, 1"); A("s_lshr_b32 s45, s7, 1")
    A("v_and_b32 v23, 15, v0"); A("v_lshrrev_b32 v24, 4, v0"); A("v_bfe_u32 v25, v0, 2, 2")
    A("v_and_b32 v26, 3, v0"); A("v_and_b32 v27, 1, v24"); A("v_lshrrev_b32 v28, 1, v24"); A("v_lshlrev_b32 v26, 3, v26")
    A("v_lshl_add_u32 v29, v27, 2, v25")
    A("v_mul_u32_u24 v20, 1056, v29"); A("v_add_u32 v20, v20, v26")
    A("v_lshl_add_u32 v30, v28, 9, v20")
    A("s_lshl_b32 s46, s45, 8"); A(f"s_add_u32 s46, s46, {SLOT_C}"); A(f"v_add_u32 v{VA}, s46, v30")
    A("v_lshl_add_u32 v30, v28, 8, v20"); A("s_lshl_b32 s46, s45, 7"); A(f"v_add_u32 v{VM}, s46, v30"); A(f"v_mov_b32 v{VML}, v{VM}")
    A("v_lshl_add_u32 v30, v28, 7, v20"); A("s_lshl_b32 s46, s45, 6"); A(f"s_add_u32 s46, s46, {UB}"); A(f"v_add_u32 v{VU}, s46, v30")
    A("v_lshrrev_b32 v30, 1, v23"); A("v_xor_b32 v30, v30, v24"); A("v_lshlrev_b32 v30, 4, v30"); A("v_lshl_add_u32 v30, v23, 7, v30")
    A("s_mul_i32 s47, s44, 6144"); A(f"s_add_u32 s46, s47, {SLOT_C+QW}")
    A(f"v_add_u32 v{VB0}, s46, v30"); A("v_xor_b32 v30, 64, v30"); A(f"v_add_u32 v{VB1}, s46, v30")
    A("v_and_b32 v31, 3, v0")
    A(f"v_mul_u32_u24 v30, {KP}, v25"); A("v_lshl_add_u32 v30, v31, 8, v30"); A("v_lshl_add_u32 v30, v27, 3, v30")
    A(f"s_mul_i32 s46, s44, {KPB}"); A(f"s_add_u32 s46, s46, {KB}"); A("v_add_u32 v30, s46, v30")
    A("v_xor_b32 v31, v31, v28"); A(f"v_lshl_add_u32 v{VK0}, v31, 4, v30")
    A("v_xor_b32 v31, 2, v31"); A(f"v_lshl_add_u32 v{VK1}, v31, 4, v30")
    A("v_lshl_add_u32 v22, v24, 2, v25")
    A("v_lshl_add_u32 v30, v22, 8, v26")
    A(f"s_mul_i32 s46, s44, {VPB}"); A(f"s_add_u32 s46, s46, {VB}"); A("v_add_u32 v30, s46, v30")
    for dt in range(8):
        A(f"v_xor_b32 v31, {dt}, v29"); A(f"v_lshl_add_u32 v{VV+dt}, v31, 5, v30")
    A(f"v_lshlrev_b32 v{VL16}, 4, v0")
    A("s_mul_i32 s46, s45, 24576"); A("s_add_u32 s46, s46, s47")
    A(f"v_add_u32 v{VOG}, s46, v{VL16}"); A(f"v_add_u32 v{VOW}, {OB}, v{VOG}")
    A(f"s_add_u32 s46, s47, {OB}"); A(f"v_add_u32 v{VO}, s46, v{VL16}")
    for i in range(48): A(f"v_mov_b64 {v(ACC+2*i,2)}, 0")
    A("v_mov_b32 v22, 0")
    A(f"v_and_b32 v{VRA}, 7, v0"); A(f"v_lshlrev_b32 v{VRA}, 2, v{VRA}"); A(f"v_add_u32 v{VRA}, {SYNC}, v{VRA}")
    A("s_lshl_b32 s46, s7, 2"); A(f"s_add_u32 s46, s46, {SYNC+16}"); A(f"v_mov_b32 v{VDA}, s46"); A(f"v_mov_b32 v{VD}, 64")
    A("s_and_b32 s46, s2, 7"); A("s_lshl3_add_u32 s46, s46, s5")
    A("s_lshl_b32 s52, s46, 8"); A("s_lshl2_add_u32 s47, s71, s7"); A("s_lshl3_add_u32 s52, s47, s52"); A(f"s_add_u32 s52, s52, {FL1}")
    A("s_lshl2_add_u32 s46, s46, s71"); A("s_mul_i32 s54, s46, 49152")
    A("s_add_u32 s55, s54, 4096"); A("s_add_u32 s56, s54, 12288"); A("s_add_u32 s57, s54, 16384")
    A("s_lshl3_add_u32 s47, s4, s5")
    A("s_lshl2_add_u32 s46, s47, s71"); A("s_lshl2_add_u32 s46, s46, s7")
    A("s_lshl_b32 s53, s46, 7"); A("s_lshl3_add_u32 s53, s3, s53"); A(f"s_add_u32 s53, s53, {FL2}")
    A("s_lshl2_add_u32 s46, s46, s3"); A("s_mul_i32 s60, s46, 6144"); A(f"s_add_u32 s60, s60, {PART}")
    A("s_lshl4_add_u32 s46, s47, s6"); A("s_lshl2_add_u32 s46, s46, s7")
    A("s_lshl_b32 s86, s46, 3"); A(f"s_add_u32 s86, s86, {FL3}")
    A("s_mul_i32 s87, s46, 3072"); A(f"s_add_u32 s87, s87, {PART3}")
    A("s_mov_b32 s51, 0x3e0293ee")
    A(f"s_mov_b32 s48, {SLOT_C}"); A("s_mov_b32 s49, 9")
    A(f"s_mov_b32 s58, {nib(MPOS) & 0xffffffff}"); A(f"s_mov_b32 s59, {nib(MPOS) >> 32}"); A(f"s_mov_b32 s61, {-4*OSL & 0xffffffff}"); A(f"s_mov_b32 s50, {OSL}")
    A(f"s_mov_b32 s85, {(1<<cfg.FA)|(1<<cfg.FB)|(1<<cfg.F3)}")
    A("s_waitcnt lgkmcnt(0)")
    mk_srd(A, SWS, 42, WS); mk_srd(A, SDBG, 82, 256)
    A("s_add_u32 s46, s2, s7"); A("s_cmp_lg_u32 s46, 0"); A("s_cbranch_scc1 L_nn")
    A("s_memrealtime s[46:47]"); A("s_waitcnt lgkmcnt(0)"); A("s_or_b32 s46, s46, 1")
    A(f"v_mov_b32 v{VN}, s46"); A(f"v_mov_b32 v{VN+1}, s47")
    A("s_mov_b64 exec, 1")
    A(f"buffer_store_dwordx2 {v(VN,2)}, v22, {srd(SDBG)}, 0 offen sc1")
    A("s_mov_b64 exec, -1")
    A("L_nn:")
    if cfg.prio: A(f"s_setprio {cfg.prio}")
    bar(A)
    L.extend(q_reads(0, 0))
    A("s_branch L_q_h1")
    out = fix(L)
    r = q_reads(0, 0)
    g2 = [[f"v_add_u32 v{VA}, s47, v{VA}"], [r[0], f"v_add_u32 v{VB0}, s47, v{VB0}"], [r[1], f"v_add_u32 v{VB1}, s47, v{VB1}"]] + [[x] for x in r[2:]]
    H2 = ["L_q_top:"] + weave(q_mfma(1), g2)
    r = q_reads(1, 1)
    g1 = [[x] for x in r] + [[f"s_add_u32 s46, s48, {QS}", f"s_cmp_eq_u32 s46, {LDS_Q_END}"], ["s_cselect_b32 s46, 0, s46", "s_sub_u32 s47, s46, s48"],
                             ["s_mov_b32 s48, s46", "s_sub_u32 s49, s49, 1"], [] if cfg.prof else ["s_cmp_lg_u32 s49, 0"]]
    H1 = ["L_q_h1:"] + weave(q_mfma(0), g1)
    tail = ["s_waitcnt lgkmcnt(0)"] + L_(bar) + (["s_cmp_lg_u32 s49, 0"] if cfg.prof else []) + ["s_cbranch_scc1 L_q_top"]
    L = H2 + H1 + tail
    L += [f"buffer_load_dwordx2 {v(VN,2)}, v22, {srd(SDBG)}, 0 offen sc1"]
    att, late = attention(q_mfma(1))
    L += att
    L += L_(stamp, False)
    L += ["s_mov_b32 s48, 0", "s_mov_b32 s49, 0", "s_waitcnt lgkmcnt(0)", f"ds_write_b32 v{VDA}, v{VD}", f"v_add_u32 v{VDA}, 16, v{VDA}", f"v_mov_b32 v{VD}, 0",
          f"s_mov_b32 s89, {cfg.spin}", "L_p0:", f"ds_read_b32 v{VR}, v{VRA}", "s_waitcnt lgkmcnt(0)", f"v_cmp_ge_u32 vcc, s49, v{VR}",
          "s_sub_u32 s89, s89, 1", "s_cbranch_scc1 L_p0x", "s_cbranch_vccnz L_p0", "L_p0x:"]
    L += L_(stamp, False)
    L += w_reads(0, 0, True)
    salu = [["s_lshr_b64 s[58:59], s[58:59], 4"], ["s_and_b32 s46, s58, 15"], [f"s_mul_i32 s46, s46, {MSL}"], ["s_cmp_eq_u32 s48, 3"], ["s_cselect_b32 s47, s61, s50"],
            ["s_add_u32 s48, s48, 1"], ["s_cmp_eq_u32 s48, 5"], ["s_cselect_b32 s48, 0, s48"], ["s_add_u32 s49, s49, 1"]]
    def h1(own, first=False, extra=[], lim=None):
        r = w_reads(1, 1, own); M = w_mfma(0, own, first)
        n = len(M)
        k = max(5, len(r) - 6)
        r = r[:k] + [f"ds_read_b32 v{VR}, v{VRA}"] + r[k:]
        g = [([r[i]] if i < len(r) else []) + (salu[i] if i < len(salu) else []) for i in range(n)]
        for i, e in enumerate(extra): g[min(n-1, i // 2 + 2)].append(e)
        g[n-2].append(f"v_cmp_ge_u32 vcc, s49, v{VR}")
        if lim: g[n-1].append(f"s_cmp_lt_u32 s49, {lim}")
        return weave(M, g)
    def h2(own, nown, n):
        r = w_reads(0, 0, nown); M = w_mfma(1, own)
        ad = [f"v_add_u32 v{VM}, s46, v{VML}", f"v_add_u32 v{VO}, s47, v{VO}"] + ([f"v_add_u32 v{VU}, {USL}, v{VU}"] if nown else []) + [f"v_add_u32 v{VD}, 1, v{VD}"]
        g = [([r[i-1]] if 1 <= i <= len(r) else []) + ([ad[i]] if i < len(ad) else []) for i in range(len(M))]
        g[-1].append(f"ds_write_b32 v{VDA}, v{VD}")
        g[0] += [f"s_cbranch_vccnz L_spin{n}", f"L_go{n}:"]
        g[5] += ["s_bitcmp1_b32 s85, s49"]
        g[6] += [f"s_cbranch_scc1 L_flag{n}", f"L_gf{n}:"]
        return weave(M, g)
    def top(n): return L_(stamp, False) + (["s_lshl_b64 s[96:97], s[96:97], 4"] if cfg.prof else [])
    def sig(so):
        if cfg.ssig: return [f"v_readfirstlane_b32 s92, v{VN}", f"v_readfirstlane_b32 s93, v{VN+1}", "s_nop 3", f"s_atomic_swap_x2 s[92:93], s[28:29], s{so}"]
        return ["s_mov_b64 exec, 1", f"buffer_store_dwordx2 {v(VN,2)}, v22, {srd(SWS)}, s{so} offen sc1", "s_mov_b64 exec, -1"]
    def flagblk(n):
        F = [f"L_flag{n}:", "s_waitcnt vmcnt(0)"]
        if n < 2:
            F += [f"s_cmp_eq_u32 s49, {cfg.FA}", "s_cselect_b32 s84, 0, 128", "s_add_u32 s84, s84, s52"]
            if not cfg.nosync:
                F += [f"s_mov_b32 s89, {cfg.spin}", f"L_fn{n}:", f"v_cmp_ne_u32 s[90:91], 0, v{VN}", "s_sub_u32 s89, s89, 1", f"s_cbranch_scc1 L_fg{n}", "s_nop 2", "s_cmp_lg_u32 s90, 0", f"s_cbranch_scc1 L_fg{n}",
                      f"buffer_load_dwordx2 {v(VN,2)}, v22, {srd(SDBG)}, 0 offen sc1", "s_waitcnt vmcnt(0)", f"s_branch L_fn{n}", f"L_fg{n}:"]
        else:
            F += ["s_mov_b32 s84, s86"]
        F += sig(84)
        if n == 0: F += [f"s_cmp_eq_u32 s49, {cfg.FA}", f"s_cbranch_scc0 L_fl{n}"] + late + [f"L_fl{n}:"]
        F += L_(stamp, False) + [f"s_branch L_gf{n}"]
        F += [f"L_spin{n}:"] + (["s_ff1_i32_b64 s98, vcc", "s_add_u32 s98, s98, 1", "s_or_b32 s96, s96, s98"] if cfg.prof else []) + \
             [f"s_mov_b32 s89, {cfg.spin}", f"L_sp{n}:", f"ds_read_b32 v{VR}, v{VRA}", "s_waitcnt lgkmcnt(0)", f"v_cmp_ge_u32 vcc, s49, v{VR}",
              "s_sub_u32 s89, s89, 1", f"s_cbranch_scc1 L_go{n}", f"s_cbranch_vccnz L_sp{n}", f"s_branch L_go{n}"]
        return F
    assert cfg.FA < cfg.FB <= 4 < cfg.F3
    uepi = []
    for qt in range(3):
        a, b = a2(4, qt), a2(5, qt)
        uepi += [f"v_cvt_pk_bf16_f32 v{PKU+4*qt}, v{a}, v{a+1}", f"v_cvt_pk_bf16_f32 v{PKU+4*qt+1}, v{a+2}, v{a+3}",
                 f"v_cvt_pk_bf16_f32 v{PKU+4*qt+2}, v{b}, v{b+1}", f"v_cvt_pk_bf16_f32 v{PKU+4*qt+3}, v{b+2}, v{b+3}",
                 f"buffer_store_dwordx4 {v(PKU+4*qt,4)}, v{VL16}, {srd(SWS)}, s87 offen offset:{qt*1024} sc1"]
    L += h1(True, True)
    L += ["L_o_top:"] + top(0) + h2(True, True, 0) + h1(True, lim=4) + ["s_cbranch_scc1 L_o_top"]
    L += top(1) + h2(True, False, 1) + h1(False, extra=uepi)
    L += ["L_r_top:"] + top(2) + h2(False, False, 2) + h1(False, lim=16) + ["s_cbranch_scc1 L_r_top"]
    L += L_(stamp, False)
    a = P2[1]
    def fin(own):
        F = []
        for i in range(6):
            qt = i >> 1
            for f in (2*(i&1), 2*(i&1)+1):
                F.append(f"v_mfma_f32_16x16x32_bf16 {v(a2(f,qt),4)}, {v(a+4*f,4)}, {v(a+24+4*qt,4)}, {v(a2(f,qt),4)}")
        for i in range(6):
            x, y = a2(2*(i&1), i>>1), a2(2*(i&1)+1, i>>1)
            F += [f"v_cvt_pk_bf16_f32 v{PK+4*i}, v{x}, v{x+1}", f"v_cvt_pk_bf16_f32 v{PK+4*i+1}, v{x+2}, v{x+3}",
                  f"v_cvt_pk_bf16_f32 v{PK+4*i+2}, v{y}, v{y+1}", f"v_cvt_pk_bf16_f32 v{PK+4*i+3}, v{y+2}, v{y+3}"]
            if own: F.append(f"ds_write_b128 v{VL16}, {v(PK+4*i,4)} offset:{i*1024}")
            else: F.append(f"buffer_store_dwordx4 {v(PK+4*i,4)}, v{VL16}, {srd(SWS)}, s{60 + (i>>2)} offen offset:{(i&3)*1024} sc1")
        return schedule(F)
    L += ["s_waitcnt lgkmcnt(0)", "s_add_u32 s61, s60, 4096", "s_cmp_eq_u32 s7, s3", "s_cbranch_scc1 L_own"]
    L += fin(False) + L_(stamp) + ["s_waitcnt vmcnt(0)", "L_own2:"] + L_(stamp)
    L += sig(53)
    dump_stamps(L.append)
    L += ["s_endpgm"]
    out += fix(L)
    out += fix(["L_own:", f"v_add_u32 v{VL16}, {LOWN}, v{VL16}", f"v_mov_b32 v{VDA}, {SYNC+48}"] + fin(True) + ["s_waitcnt lgkmcnt(0)", f"ds_write_b32 v{VDA}, v{VD}"] + L_(stamp) + ["s_branch L_own2"])
    for n in range(3): out += fix(flagblk(n))
    out += fix(["L_kvs:", f"s_mov_b32 s89, {cfg.spin}", "L_kvs2:", f"ds_read_b32 v{VR}, v{VRA} offset:64", "s_waitcnt lgkmcnt(0)", f"v_cmp_eq_u32 vcc, 0, v{VR}",
                "s_sub_u32 s89, s89, 1", "s_cbranch_scc1 L_kvg", "s_cbranch_vccnz L_kvs2", "s_branch L_kvg"])
    out += fix(["L_vls:", f"s_mov_b32 s89, {cfg.spin}", "L_vls2:", f"ds_read_b32 v{VR}, v{VRA} offset:96", "s_waitcnt lgkmcnt(0)", f"v_cmp_eq_u32 vcc, 0, v{VR}",
                "s_sub_u32 s89, s89, 1", "s_cbranch_scc1 L_vlg", "s_cbranch_vccnz L_vls2", "s_branch L_vlg"])
    return out

def main_kernel():
    ins = fix(L_(prologue)) + compute() + loader() + [I("L_end:")]
    return text(ins)
def build(path):
    hdr = open("concat_heads__gqa_block_cached__gqa_block_cached__near_ridge.s.ref").read().split("; Override launch")[0]
    s = hdr + f"; @launch grid=(256,1,1) block=(512,1,1) lds=163840\n"
    s += '.amdgcn_target "amdgcn-amd-amdhsa--gfx950"\n'
    s += mkkernel(KN, main_kernel(), vgpr=256, sgpr=102, accum=256)
    open(path, "w").write(s)
if __name__ == "__main__":
    out = sys.argv[1]
    for a in sys.argv[2:]:
        k, val = a.split("=")
        cur = getattr(cfg, k)
        setattr(cfg, k, (val == "1") if isinstance(cur, bool) else type(cur)(val.replace("_"," ") if isinstance(cur,str) else val))
    build(out)
```

```python
import sys
from asmlib import *
from mb_common import kernel as mkkernel
KN = "concat_heads__gqa_block_cached__gqa_block_cached__near_ridge_kernel"
WS = 268435456
class Cfg:
    prof = False
    ld_x = ""; ld_w = ""; ld_kv = ""; ld_wo = ""; ld_o = "sc1"
    FA = 1; FB = 3; F3 = 7
    sched = True; bias = 1000
    spin = 2000000
    prio = 1; slp = 2
    ssig = True; spoll = True; vpre = 4; rotm = True; LS = 1; allpoll = True
    no_dma = False; nosync = False; no_ostore = False
cfg = Cfg()
QW = 33792; QS = 46080; LDS_Q_END = 138240; SLOT_C = 92160
KB = 112128; KPB = 13056; KP = 1088
VB = 138240; VPB = 12288
OR0 = 102400; OSL = 12288; OB = OR0 + OSL
MSL = 16896; UB = 4*MSL; USL = 8448
LOWN = 0
MPOS = [0,1,2,3,0,4,1,2,5,3,0,4,1,2,5,3]
MTHR = [0,0,0,0,1,2,2,3,4,4,5,6,7,8,9,10]
def nib(t): return sum(x << (4*i) for i, x in enumerate(t))
SYNC = 101376
PART = 256*49152; PART3 = PART + 1024*6144; FL1 = PART3 + 256*12288; FL2 = FL1 + 64*256; FL3 = FL2 + 256*128
SX, SK, SV, SWQ, SWO, SWS, SOUT, SDBG = 8, 12, 16, 20, 24, 28, 72, 76
def srd(r): return f"s[{r}:{r+3}]"
def v(a, n=1): return f"v{a}" if n == 1 else f"v[{a}:{a+n-1}]"
PV = 1
def flush(A, wait=True):
    if wait: A("s_waitcnt lgkmcnt(0)")
    A("s_sub_u32 s64, s64, s66"); A("s_lshl_b64 exec, 1, s70")
    A(f"v_mov_b32 v{PV}, s64"); A("s_mov_b64 exec, -1"); A("s_add_u32 s70, s70, 1")
def stamp(A, wait=True):
    if cfg.prof:
        flush(A, wait); A("s_memtime s[64:65]")
def bar(A):
    if cfg.prof: flush(A)
    A("s_barrier")
    if cfg.prof: A("s_memtime s[64:65]")
def L_(f, *a):
    L = []; f(L.append, *a); return L
def mk_srd(A, r, ptr, size):
    A(f"s_mov_b32 s{r}, s{ptr}"); A(f"s_mov_b32 s{r+1}, s{ptr+1}")
    A(f"s_mov_b32 s{r+2}, {size}"); A(f"s_mov_b32 s{r+3}, 0x20000")
def prologue(A):
    A("s_cmp_ge_u32 s2, 256"); A("s_cbranch_scc1 L_end")
    A("s_bfe_u32 s4, s2, 0x10002")
    A("s_mul_i32 s44, s4, 40"); A("s_add_u32 s46, s0, s44"); A("s_addc_u32 s47, s1, 0")
    A("s_load_dwordx8 s[32:39], s[46:47], 0")
    A("s_load_dwordx2 s[40:41], s[46:47], 32")
    A("s_load_dwordx4 s[80:83], s[0:1], 80")
    A("s_load_dwordx2 s[42:43], s[0:1], 96")
    if cfg.prof:
        A("s_memrealtime s[62:63]"); A("s_memtime s[66:67]"); A("s_memtime s[64:65]"); A("s_mov_b32 s70, 2"); A("s_mov_b64 s[96:97], 0")
    A("v_lshrrev_b32 v1, 6, v0")
    A("s_bfe_u32 s5, s2, 0x30003")
    A("v_readfirstlane_b32 s7, v1")
    A("s_lshr_b32 s71, s2, 6")
    A("s_and_b32 s3, s2, 3")
    A("s_lshl2_add_u32 s6, s3, s71")
    A("v_and_b32 v0, 63, v0")
    A("s_cmp_ge_u32 s7, 4"); A("s_cbranch_scc1 L_loader")
def dump_stamps(A):
    if not cfg.prof: return
    stamp(A)
    A(f"v_writelane_b32 v{PV}, s62, 0"); A(f"v_writelane_b32 v{PV}, s96, 61"); A(f"v_writelane_b32 v{PV}, s97, 62")
    A("s_memrealtime s[62:63]"); A("s_waitcnt lgkmcnt(0)"); A(f"v_writelane_b32 v{PV}, s62, 63")
    A("s_getreg_b32 s61, hwreg(HW_REG_XCC_ID)")
    A("s_lshl_b32 s61, s61, 8"); A("s_add_u32 s61, s61, s70")
    A(f"v_writelane_b32 v{PV}, s61, 1")
    A("v_lshlrev_b32 v3, 2, v0")
    A("s_lshl_b32 s61, s2, 11"); A("s_lshl_b32 s60, s7, 8"); A("s_add_u32 s61, s61, s60")
    A(f"s_add_u32 s61, s61, {WS-524288}")
    A(f"buffer_store_dword v{PV}, v3, s[28:31], s61 offen")
def poll(A, tag, voff, soff, off=0):
    if cfg.nosync: return
    A(f"s_mov_b32 s89, {cfg.spin}")
    A(f"L_poll{tag}:")
    A(f"buffer_load_dwordx2 v[30:31], v{voff}, {srd(SWS)}, s{soff} offen offset:{off} sc1")
    A("s_waitcnt vmcnt(0)")
    A("v_cmp_eq_u64 vcc, s[58:59], v[30:31]")
    A("s_sub_u32 s89, s89, 1")
    A("s_cbranch_scc1 L_pollx" + tag)
    A("s_nop 2")
    A("s_cmp_eq_u64 vcc, exec")
    A(f"s_cbranch_scc0 L_poll{tag}")
    A(f"L_pollx{tag}:")
def get_nonce_s(A, tag):
    A(f"s_mov_b32 s89, {cfg.spin}")
    A("v_mov_b32 v29, 0")
    A(f"L_non{tag}:")
    A(f"buffer_load_dwordx2 v[30:31], v29, {srd(SDBG)}, 0 offen sc1")
    A("s_waitcnt vmcnt(0)")
    A("v_readfirstlane_b32 s58, v30"); A("v_readfirstlane_b32 s59, v31")
    A("s_sub_u32 s89, s89, 1")
    A(f"s_cbranch_scc1 L_nonx{tag}")
    A("s_cmp_eq_u32 s58, 0")
    A(f"s_cbranch_scc1 L_non{tag}")
    A(f"L_nonx{tag}:")
def lds_wait(A, tag, vaddr, sneed):
    A(f"s_mov_b32 s89, {cfg.spin}")
    A(f"L_lw{tag}:")
    A(f"ds_read_b32 v30, v{vaddr}")
    A("s_waitcnt lgkmcnt(0)")
    A(f"v_cmp_gt_u32 vcc, {sneed}, v30")
    A("s_sub_u32 s89, s89, 1")
    A(f"s_cbranch_scc1 L_lwx{tag}")
    A(f"s_cbranch_vccz L_lwx{tag}")
    A(f"s_sleep {cfg.slp}")
    A(f"s_branch L_lw{tag}")
    A(f"L_lwx{tag}:")
def spoll(A, tag, soff, off, n):
    if cfg.nosync: return
    A(f"s_mov_b32 s89, {cfg.spin}")
    A(f"s_add_u32 s88, s{soff}, {off}")
    if n == 16: A("s_add_u32 s87, s88, 64")
    A(f"L_sp{tag}:")
    if n == 16:
        A("s_load_dwordx16 s[8:23], s[28:29], s88 glc"); A("s_load_dwordx16 s[32:47], s[28:29], s87 glc")
        regs = list(range(8, 24, 2)) + list(range(32, 48, 2))
    else:
        A("s_load_dwordx8 s[8:15], s[28:29], s88 glc"); regs = list(range(8, 16, 2))
    A("s_waitcnt lgkmcnt(0)")
    for r in regs: A(f"s_xor_b64 s[{r}:{r+1}], s[{r}:{r+1}], s[58:59]")
    for r in regs[1:]: A(f"s_or_b64 s[8:9], s[8:9], s[{r}:{r+1}]")
    A(f"s_cbranch_scc0 L_spx{tag}")
    A("s_sub_u32 s89, s89, 1")
    A(f"s_cbranch_scc0 L_sp{tag}")
    A(f"L_spx{tag}:")
def get_nonce_ss(A, tag):
    A(f"s_mov_b32 s89, {cfg.spin}")
    A(f"L_non{tag}:")
    A("s_load_dwordx2 s[58:59], s[82:83], 0 glc"); A("s_waitcnt lgkmcnt(0)")
    A("s_cmp_lg_u32 s58, 0"); A(f"s_cbranch_scc1 L_nonx{tag}")
    A("s_sub_u32 s89, s89, 1"); A(f"s_cbranch_scc0 L_non{tag}")
    A(f"L_nonx{tag}:")
STG = 64
def stage_index(A, j, dst):
    A(f"s_add_u32 s44, s48, {4*j}"); A("s_mul_i32 s45, s44, 86"); A("s_lshr_b32 s45, s45, 8")
    A("s_mul_i32 s46, s45, 3"); A("s_sub_u32 s44, s44, s46"); A("s_add_u32 s44, s44, s71"); A("s_add_u32 s44, s44, 1"); A("s_and_b32 s44, s44, 3")
    A("s_lshl_b32 s45, s45, 3"); A("s_lshr_b32 s45, 0x03010200, s45"); A("s_and_b32 s45, s45, 3"); A(f"s_lshl2_add_u32 s{dst}, s44, s45")
def stage_loads(A, j):
    A(f"s_mul_i32 s44, s{90+j}, 73728"); A("s_add_u32 s44, s44, s95")
    for i in range(16):
        if i % 4 == 0 and i: A(f"s_add_u32 s44, s44, {4*1152 if i != 8 else 28*1152}")
        A(f"buffer_load_dwordx4 {v(STG+64*j+4*i,4)}, v16, {srd(SWO)}, s44 offen offset:{(i%4)*1152} {cfg.ld_wo}")

def loader():
    L = []; A = L.append
    A("L_loader:")
    A("s_and_b32 s48, s7, 3")
    A("v_lshrrev_b32 v1, 5, v0"); A("v_lshlrev_b32 v1, 17, v1")
    A("v_and_b32 v2, 31, v0"); A("v_lshl_add_u32 v10, v2, 4, v1")
    A("s_and_b32 s57, s48, 1"); A("s_lshr_b32 s49, s48, 1")
    A("s_lshl_b32 s50, s6, 9"); A("s_lshl_b32 s44, s57, 15"); A("s_add_u32 s50, s50, s44")
    A("s_lshl_b32 s44, s49, 18"); A("s_add_u32 s50, s50, s44")
    A("s_mul_i32 s52, s48, 8448")
    A("v_lshrrev_b32 v1, 3, v0"); A("v_mul_u32_u24 v1, 1152, v1")
    A("v_and_b32 v2, 7, v0"); A("v_lshrrev_b32 v3, 4, v0"); A("v_xor_b32 v2, v2, v3")
    A("s_lshl_b32 s44, s57, 2"); A("v_xor_b32 v2, s44, v2")
    A("v_lshl_add_u32 v11, v2, 4, v1")
    A("v_xor_b32 v2, 4, v2"); A("v_lshl_add_u32 v12, v2, 4, v1")
    A("s_mul_i32 s51, s5, 110592"); A("s_mul_i32 s44, s48, 27648"); A("s_add_u32 s51, s51, s44")
    A("s_mul_i32 s53, s48, 3072"); A(f"s_add_u32 s53, s53, {QW}")
    A(f"s_mov_b32 s55, {SLOT_C}")
    A("s_mov_b32 s61, 0"); A("s_mov_b32 s88, 0")
    A("s_mov_b32 s22, 4718592"); A("s_mov_b32 s23, 0x20000"); A("s_mov_b32 s10, 884736"); A("s_mov_b32 s11, 0x20000")
    A("s_waitcnt lgkmcnt(0)")
    A("s_mov_b32 s20, s38"); A("s_mov_b32 s21, s39"); A("s_mov_b32 s8, s32"); A("s_mov_b32 s9, s33")
    stamp(A)
    A("L_lq:")
    A("s_mov_b32 s44, s50"); A("s_add_u32 m0, s55, s52")
    for jj in range(8):
        if jj:
            A(f"s_add_u32 m0, m0, 1056"); A(f"s_add_u32 s44, s44, {8192 if jj != 4 else 5*8192}")
        else: A("s_add_u32 s50, s50, 524288")
        A(f"buffer_load_dwordx4 v10, {srd(SWQ)}, s44 offen {cfg.ld_w} lds")
    A("s_add_u32 m0, s55, s53"); A("s_mov_b32 s45, s51")
    for jj in range(3):
        if jj:
            A("s_add_u32 m0, m0, 1024"); A(f"s_add_u32 s45, s45, {8*1152}")
        A(f"buffer_load_dwordx4 v{11 + (jj&1)}, {srd(SX)}, s45 offen {cfg.ld_x} lds")
    A("s_add_u32 s51, s51, 128")
    A(f"s_add_u32 s55, s55, {QS}"); A(f"s_cmp_eq_u32 s55, {LDS_Q_END}"); A("s_cselect_b32 s55, 0, s55")
    A("s_add_u32 s61, s61, 1")
    A("s_cmp_eq_u32 s88, 2"); A("s_cbranch_scc1 L_lq_next")
    A("s_cmp_eq_u32 s88, 1"); A("s_cbranch_scc1 L_setup")
    A("s_cmp_lt_u32 s61, 2"); A("s_cbranch_scc1 L_lq")
    A("s_mov_b32 s88, 1")
    stamp(A)
    A("s_waitcnt vmcnt(11)"); bar(A)
    A("s_branch L_lq")
    A("L_setup:")
    A("s_mov_b32 s88, 2")
    mk_srd(A, SK, 34, 3145728); mk_srd(A, SV, 36, 3145728); mk_srd(A, SWO, 40, 4718592)
    mk_srd(A, SWS, 42, WS); mk_srd(A, SOUT, 80, 1769472); mk_srd(A, SDBG, 82, 256)
    A("v_lshrrev_b32 v1, 4, v0"); A("v_and_b32 v2, 15, v0"); A("v_xor_b32 v3, v2, v1")
    A("v_lshlrev_b32 v3, 4, v3"); A("v_lshl_add_u32 v13, v1, 8, v3")
    A(f"s_mul_i32 s44, s49, {KPB}"); A(f"s_mul_i32 s45, s57, {6*KP}"); A("s_add_u32 s44, s44, s45"); A(f"s_add_u32 s44, s44, {KB}")
    A("v_add_u32 v13, s44, v13")
    A("v_mul_u32_u24 v16, 9216, v1"); A("v_lshl_add_u32 v16, v2, 4, v16")
    A("v_lshlrev_b32 v26, 3, v2")
    A("v_bfe_u32 v2, v0, 1, 3"); A("v_xor_b32 v2, v2, v1"); A("v_lshlrev_b32 v2, 5, v2")
    A("v_and_b32 v3, 1, v0"); A("v_lshl_add_u32 v2, v3, 4, v2"); A("v_lshl_add_u32 v14, v1, 8, v2")
    A("v_lshrrev_b32 v1, 3, v0"); A("v_mul_u32_u24 v1, 9216, v1"); A("v_and_b32 v2, 7, v0"); A("v_lshl_add_u32 v17, v2, 4, v1")
    A("s_lshl1_add_u32 s56, s5, s49"); A("s_lshl4_add_u32 s56, s56, s6"); A("s_mul_i32 s56, s56, 12288")
    A("s_mul_i32 s44, s57, 6144"); A("s_add_u32 s56, s56, s44")
    A("s_mov_b32 s84, s56")
    A(f"s_mul_i32 s85, s49, {VPB}"); A("s_add_u32 s85, s85, s44"); A(f"s_add_u32 s85, s85, {VB}")
    A("v_lshlrev_b32 v25, 4, v0")
    A("v_and_b32 v18, 3, v0"); A("v_lshlrev_b32 v18, 2, v18"); A(f"v_add_u32 v18, {SYNC+32}, v18")
    A("s_lshl_b32 s44, s48, 2"); A(f"s_add_u32 s44, s44, {SYNC}"); A("v_mov_b32 v19, s44"); A(f"v_mov_b32 v20, {SYNC+48}")
    A("s_mul_i32 s95, s3, 1179648"); A("s_lshl_b32 s44, s71, 8"); A("s_add_u32 s95, s95, s44")
    for j in range(3): stage_index(A, j, 90+j)
    A("s_and_b32 s44, s2, 7"); A("s_lshl3_add_u32 s44, s44, s5")
    A("s_lshl_b32 s93, s44, 8"); A(f"s_add_u32 s93, s93, {FL1}")
    A("s_mul_i32 s54, s44, 196608")
    A("L_lq_next:")
    for n in range(3, 9):
        A(f"s_cmp_eq_u32 s61, {n}"); A(f"s_cbranch_scc0 L_k{n}")
        A(f"buffer_load_dwordx4 {v(40+4*(n-3),4)}, v25, {srd(SK)}, s56 offen offset:{(n-3)%4*1024} {cfg.ld_kv}")
        if n == 6: A("s_add_u32 s56, s56, 4096")
        A("s_waitcnt vmcnt(13)" if n > 3 else "s_waitcnt vmcnt(12)")
        A("s_branch L_lq_b")
        A(f"L_k{n}:")
    A("s_waitcnt vmcnt(11)")
    A("L_lq_b:")
    bar(A)
    A("s_cmp_lt_u32 s61, 9"); A("s_cbranch_scc1 L_lq")
    A("v_mov_b32 v29, 0"); A(f"buffer_load_dwordx2 v[32:33], v29, {srd(SDBG)}, 0 offen sc1")
    for jj in range(6): A(f"ds_write_b128 v13, {v(40+4*jj,4)} offset:{jj*KP}")
    A("v_min_u32 v2, 31, v0"); A("v_and_b32 v3, 20, v2"); A("v_lshlrev_b32 v2, 2, v2"); A(f"v_add_u32 v2, {SYNC}, v2")
    A("v_cmp_eq_u32 vcc, 20, v3"); A("v_cndmask_b32 v30, 0, 1, vcc"); A("ds_write_b32 v2, v30")
    A("s_waitcnt vmcnt(0)"); bar(A)
    A("s_mov_b32 m0, s85")
    for jj in range(6):
        if jj == 4: A("s_add_u32 m0, m0, 4096"); A("s_add_u32 s84, s84, 4096")
        if jj == 0: A("v_xor_b32 v15, 128, v14")
        A(f"buffer_load_dwordx4 v{14 + (jj&1)}, {srd(SV)}, s84 offen offset:{(jj%4)*1024} {cfg.ld_kv} lds")
    A("v_readfirstlane_b32 s58, v32"); A("v_readfirstlane_b32 s59, v33"); A("s_cmp_lg_u32 s58, 0"); A("s_cbranch_scc1 L_nok")
    get_nonce_s(A, "l")
    A("L_nok:")
    A(f"s_mov_b32 s98, {nib(MPOS) & 0xffffffff}"); A(f"s_mov_b32 s99, {nib(MPOS) >> 32}")
    A(f"s_mov_b32 s100, {nib(MTHR) & 0xffffffff}"); A(f"s_mov_b32 s101, {nib(MTHR) >> 32}")
    A("s_lshl_b32 s44, s48, 2"); A("s_add_u32 s44, s44, 16"); A("s_lshr_b64 s[98:99], s[98:99], s44"); A("s_lshr_b64 s[100:101], s[100:101], s44")
    A(f"v_mov_b32 v22, {SYNC+52}"); A(f"v_mov_b32 v23, {SYNC+56}"); A("v_mov_b32 v24, 1")
    A("s_lshl2_add_u32 s44, s71, s48"); A("s_mul_i32 s44, s44, 73728"); A("s_add_u32 s45, s44, s95")
    A(f"s_mul_i32 s47, s48, {MSL}"); A("s_mul_i32 s46, s3, 1179648")
    A("s_waitcnt lgkmcnt(0)"); bar(A)
    def m_dma(first_hook=None):
        if not cfg.rotm:
            A("s_mov_b32 m0, s47")
            for i in range(16):
                if i: A("s_add_u32 m0, m0, 1056"); A(f"s_add_u32 s45, s45, {1152 if i != 8 else 25*1152}")
                else: A("s_nop 0")
                if first_hook and i == cfg.vpre: first_hook()
                A(f"buffer_load_dwordx4 v16, {srd(SWO)}, s45 offen {cfg.ld_wo} lds")
            return
        A("s_lshl_b32 s55, s5, 1")
        for i in range(16):
            A("s_mul_i32 s56, s55, 1056"); A("s_add_u32 m0, s56, s47")
            A("s_and_b32 s56, s55, 8"); A("s_mul_i32 s56, s56, 3"); A("s_add_u32 s56, s56, s55"); A("s_mul_i32 s56, s56, 1152"); A("s_add_u32 s56, s56, s45")
            if first_hook and i == cfg.vpre: first_hook()
            A(f"buffer_load_dwordx4 v16, {srd(SWO)}, s56 offen {cfg.ld_wo} lds")
            if i < 15: A("s_add_u32 s55, s55, 1"); A("s_and_b32 s55, s55, 15")
    def vsig():
        A(f"s_waitcnt vmcnt({cfg.vpre})"); A("ds_write_b32 v19, v24 offset:96"); stamp(A)
    m_dma(vsig)
    A("s_add_u32 s45, s44, s46"); A("s_add_u32 s45, s45, 1024")
    A(f"s_mul_i32 s46, s48, {USL}"); A(f"s_add_u32 s47, s46, {UB}")
    A("s_mov_b32 s55, s5" if cfg.rotm else "s_mov_b32 s55, 0")
    for i in range(8):
        A("s_mul_i32 s56, s55, 1056"); A("s_add_u32 m0, s56, s47"); A("s_mul_i32 s56, s55, 1152"); A("s_add_u32 s56, s56, s45")
        A(f"buffer_load_dwordx4 v17, {srd(SWO)}, s56 offen {cfg.ld_wo} lds")
        if i < 7: A("s_add_u32 s55, s55, 1"); A("s_and_b32 s55, s55, 7")
    A("s_add_u32 s60, s48, 4"); A("v_mov_b32 v31, s60"); A("s_waitcnt vmcnt(0)"); A("ds_write_b32 v19, v31")
    stamp(A)
    A("s_mov_b32 s61, 0")
    A("L_st:")
    A("s_and_b32 s60, s100, 15"); A("s_and_b32 s44, s98, 15"); A(f"s_mul_i32 s47, s44, {MSL}")
    A("s_lshr_b64 s[98:99], s[98:99], 16"); A("s_lshr_b64 s[100:101], s[100:101], 16")
    A("s_mul_i32 s45, s90, 73728"); A("s_add_u32 s45, s45, s95")
    lds_wait(A, "m", 18, "s60")
    m_dma()
    stamp(A)
    A("s_add_u32 s60, s48, s61")
    A("s_cmp_ge_u32 s60, 6"); A("s_cselect_b32 s44, 4, 0"); A("v_add_u32 v21, s44, v22"); A("s_lshl_b32 s44, s44, 5"); A("s_add_u32 s88, s93, s44"); A("s_add_u32 s87, s88, 64")
    if not cfg.nosync:
        if not cfg.allpoll:
            A("s_cmp_eq_u32 s60, 0"); A("s_cbranch_scc1 L_fp"); A("s_cmp_eq_u32 s60, 6"); A("s_cbranch_scc1 L_fp")
            lds_wait(A, "fl", 21, 1)
            A("s_branch L_fpx")
        A("L_fp:")
        A(f"s_mov_b32 s89, {cfg.spin}")
        A("L_fp1:")
        A("ds_read_b32 v30, v21"); A("s_waitcnt lgkmcnt(0)"); A("v_cmp_ne_u32 vcc, 0, v30"); A("s_cbranch_vccnz L_fpx")
        A("s_load_dwordx16 s[8:23], s[28:29], s88 glc"); A("s_load_dwordx16 s[32:47], s[28:29], s87 glc")
        regs = list(range(8, 24, 2)) + list(range(32, 48, 2))
        A("s_waitcnt lgkmcnt(0)")
        for r in regs: A(f"s_xor_b64 s[{r}:{r+1}], s[{r}:{r+1}], s[58:59]")
        for r in regs[1:]: A(f"s_or_b64 s[8:9], s[8:9], s[{r}:{r+1}]")
        A("s_cbranch_scc0 L_fp2")
        A("s_sub_u32 s89, s89, 1"); A("s_cbranch_scc0 L_fp1")
        A("L_fp2:")
        A("ds_write_b32 v21, v24")
        A("L_fpx:")
    lds_wait(A, "o", 18, "s60")
    stamp(A)
    A("s_mul_i32 s44, s60, 52"); A("s_lshr_b32 s44, s44, 8"); A("s_mul_i32 s44, s44, 5"); A("s_sub_u32 s44, s60, s44")
    A(f"s_mul_i32 s44, s44, {OSL}"); A(f"s_add_u32 m0, s44, {OR0}")
    A(f"s_mul_i32 s44, s90, 12288"); A("s_add_u32 s44, s44, s54")
    for ii in range(12):
        if ii % 4 == 0 and ii: A("s_add_u32 m0, m0, 4096"); A("s_add_u32 s44, s44, 4096")
        A(f"buffer_load_dwordx4 v25, {srd(SWS)}, s44 offen offset:{(ii%4)*1024} {cfg.ld_o} lds")
    A("s_add_u32 s60, s60, 8"); A("v_mov_b32 v31, s60"); A("s_mov_b32 s90, s91"); A("s_mov_b32 s91, s92")
    A("s_waitcnt vmcnt(0)"); A("ds_write_b32 v19, v31")
    stamp(A)
    A("s_add_u32 s61, s61, 4"); A("s_cmp_lt_u32 s61, 12"); A("s_cbranch_scc1 L_st")
    A("s_setprio 3")
    A("s_mov_b32 s86, 0x3f80"); A("s_mov_b32 s85, 0x3f800000")
    A("s_lshl3_add_u32 s47, s4, s5")
    A("s_cmp_eq_u32 s48, 0"); A("s_cbranch_scc1 L_fin_u")
    A("s_sub_u32 s48, s48, 1")
    A("s_lshl2_add_u32 s44, s47, s71"); A("s_lshl2_add_u32 s44, s44, s3")
    A("s_lshl_b32 s51, s44, 7"); A(f"s_add_u32 s51, s51, {FL2}")
    A("s_mul_i32 s50, s44, 24576"); A("s_lshl_b32 s45, s48, 11"); A("s_add_u32 s50, s50, s45"); A(f"s_add_u32 s50, s50, {PART}")
    for i in range(3):
        A(f"s_add_u32 s46, s3, {i+1}"); A("s_and_b32 s46, s46, 3"); A("s_mul_i32 s46, s46, 6144"); A(f"s_add_u32 s{52+i}, s50, s46")
    A(f"s_add_u32 s45, s45, {LOWN}"); A("v_add_u32 v29, s45, v25")
    A("v_and_b32 v27, 3, v0"); A("v_lshlrev_b32 v27, 3, v27")
    A("v_and_b32 v2, 15, v0"); A("v_mul_u32_u24 v2, 2304, v2"); A("v_lshrrev_b32 v3, 4, v0"); A("v_lshl_add_u32 v28, v3, 3, v2")
    A("s_and_b32 s44, s3, 1"); A("s_lshl1_add_u32 s44, s5, s44"); A("s_mul_i32 s60, s44, 110592")
    A("s_mul_i32 s44, s48, 36864"); A("s_add_u32 s60, s60, s44")
    A("s_mul_i32 s44, s4, 1152"); A("s_add_u32 s60, s60, s44"); A("s_lshl_b32 s44, s71, 8"); A("s_add_u32 s60, s60, s44")
    A("s_lshr_b32 s44, s3, 1"); A("s_lshl_b32 s44, s44, 7"); A("s_add_u32 s60, s60, s44")
    lds_wait(A, "f", 20, 1)
    stamp(A)
    A("ds_read_b128 v[32:35], v29"); A("ds_read_b128 v[36:39], v29 offset:1024")
    if cfg.spoll: spoll(A, "f", 51, 0, 4)
    else: poll(A, "f", 27, 51)
    stamp(A)
    for i in range(3):
        A(f"buffer_load_dwordx4 {v(40+8*i,4)}, v25, {srd(SWS)}, s{52+i} offen sc1")
        A(f"buffer_load_dwordx4 {v(44+8*i,4)}, v25, {srd(SWS)}, s{52+i} offen offset:1024 sc1")
    A("s_waitcnt lgkmcnt(0)")
    for j in range(8):
        A(f"v_lshlrev_b32 v{64+2*j}, 16, v{32+j}"); A(f"v_and_b32 v{65+2*j}, 0xffff0000, v{32+j}")
    for i in range(3):
        A(f"s_waitcnt vmcnt({4-2*i})")
        for j in range(8):
            A(f"v_dot2_f32_bf16 v{64+2*j}, v{40+8*i+j}, s86, v{64+2*j}")
            A(f"v_dot2_f32_bf16 v{65+2*j}, v{40+8*i+j}, s85, v{65+2*j}")
    A("s_nop 2")
    for j in range(8): A(f"v_cvt_pk_bf16_f32 v{32+j}, v{64+2*j}, v{65+2*j}")
    for j in range(4): A(f"buffer_store_dwordx2 {v(32+2*j,2)}, v28, {srd(SOUT)}, s60 offen offset:{32*j}")
    A("s_branch L_fin4")
    A("L_fin_u:")
    A("s_lshl_b32 s51, s47, 9"); A(f"s_add_u32 s51, s51, {FL3}")
    A("s_mul_i32 s50, s47, 196608"); A("s_mul_i32 s44, s6, 768"); A("s_add_u32 s50, s50, s44"); A(f"s_add_u32 s50, s50, {PART3}")
    A("v_lshlrev_b32 v27, 3, v0")
    A("s_mul_i32 s44, s6, 48"); A("v_add_u32 v2, s44, v0")
    A("v_lshrrev_b32 v3, 6, v2")
    A("v_mul_u32_u24 v4, 86, v3"); A("v_lshrrev_b32 v4, 8, v4")
    A("v_mul_u32_u24 v5, 3, v4"); A("v_sub_u32 v5, v3, v5")
    A("v_and_b32 v6, 1, v4"); A("v_mul_u32_u24 v6, 48, v6"); A("v_lshl_add_u32 v6, v5, 4, v6")
    A("v_and_b32 v5, 15, v2"); A("v_add_u32 v6, v6, v5"); A("v_mul_u32_u24 v6, 2304, v6")
    A("v_lshrrev_b32 v4, 1, v4"); A("v_lshl_add_u32 v6, v4, 6, v6")
    A("v_bfe_u32 v5, v2, 4, 2"); A("v_lshl_add_u32 v28, v5, 3, v6")
    A("s_mul_i32 s60, s5, 221184"); A("s_mul_i32 s44, s4, 1152"); A("s_add_u32 s60, s60, s44"); A("s_add_u32 s60, s60, 1024")
    poll(A, "u", 27, 51)
    stamp(A)
    A("s_mov_b32 exec_hi, 0xffff")
    for i in range(16):
        A(f"buffer_load_dwordx4 {v(40+4*i,4)}, v25, {srd(SWS)}, s50 offen sc1")
        if i < 15: A("s_add_u32 s50, s50, 12288")
    A("s_waitcnt vmcnt(15)")
    for j in range(4):
        A(f"v_lshlrev_b32 v{32+2*j}, 16, v{40+j}"); A(f"v_and_b32 v{33+2*j}, 0xffff0000, v{40+j}")
    for i in range(1, 16):
        A(f"s_waitcnt vmcnt({15-i})")
        for j in range(4):
            A(f"v_dot2_f32_bf16 v{32+2*j}, v{40+4*i+j}, s86, v{32+2*j}")
            A(f"v_dot2_f32_bf16 v{33+2*j}, v{40+4*i+j}, s85, v{33+2*j}")
    A("s_nop 2")
    for j in range(4): A(f"v_cvt_pk_bf16_f32 v{40+j}, v{32+2*j}, v{33+2*j}")
    A(f"buffer_store_dwordx2 v[40:41], v28, {srd(SOUT)}, s60 offen")
    A(f"buffer_store_dwordx2 v[42:43], v28, {srd(SOUT)}, s60 offen offset:32")
    A("s_mov_b64 exec, -1")
    A("L_fin4:")
    if cfg.prof: A("s_waitcnt vmcnt(0)"); stamp(A)
    dump_stamps(A)
    A("s_branch L_end")
    if cfg.no_dma: L = [x for x in L if not (x.startswith('buffer_load_dwordx4') and (x.endswith('lds') or 's[24:27]' in x or 's[12:15]' in x))]
    return fix(L)

VA, VB0, VB1, VK0, VK1, VV, VOW, VOG, VM, VU, VO, VL16 = 2, 3, 4, 5, 6, 7, 15, 16, 17, 18, 19, 21
VRA, VDA, VR, VD = 29, 30, 31, 20
VN = 156; VML = 158
SET = {1: (32, 64), 0: (76, 108)}
ACC = 160
def acc(qt, dt): return ACC + qt*32 + dt*4
KF = 76
def q_reads(ks, st):
    a, b = SET[st]; R = []
    for qt in range(3): R.append(f"ds_read_b128 {v(b+4*qt,4)}, v{VB0+ks} offset:{qt*2048}")
    for dt in range(8):
        for half in range(2):
            R.append(f"ds_read_b64_tr_b16 {v(a+4*dt+2*half,2)}, v{VA} offset:{ks*16896+half*8448+dt*32}")
    return R[3:5] + R[0:3] + R[5:]
def q_mfma(st):
    a, b = SET[st]
    return [f"v_mfma_f32_16x16x32_bf16 {v(acc(qt,dt),4)}, {v(a+4*dt,4)}, {v(b+4*qt,4)}, {v(acc(qt,dt),4)}" for dt in range(8) for qt in range(3)]
def weave(M, gaps):
    out = []
    for i, m in enumerate(M):
        out.append(m)
        if i < len(gaps): out.extend(gaps[i])
    for g in gaps[len(M):]: out.extend(g)
    return out
P2 = {0: 32, 1: 68}
AC2 = 104; ACU = 160; PK = 184; PKU = 224
def a2(f, qt): return AC2 + (f*3+qt)*4 if f < 4 else ACU + ((f-4)*3+qt)*4
def w_reads(ks, st, own):
    a = P2[st]; R = []
    for f in range(6 if own else 4):
        for half in range(2):
            if f < 4: R.append(f"ds_read_b64_tr_b16 {v(a+4*f+2*half,2)}, v{VM} offset:{ks*8448+half*512+f*32}")
            else: R.append(f"ds_read_b64_tr_b16 {v(a+4*f+2*half,2)}, v{VU} offset:{(ks*4+half*2)*128+(f-4)*32}")
    B = [f"ds_read_b128 {v(a+24+4*qt,4)}, v{VO} offset:{qt*2048+ks*1024}" for qt in range(3)]
    return R[:2] + B + R[2:]
def w_mfma(st, own, first=False):
    a = P2[st]
    return [f"v_mfma_f32_16x16x32_bf16 {v(a2(f,qt),4)}, {v(a+4*f,4)}, {v(a+24+4*qt,4)}, {'0' if first else v(a2(f,qt),4)}"
            for f in range(6 if own else 4) for qt in range(3)]

def attention(lastq):
    L = []; bias = {}
    cur = [0]
    def A(x):
        bias[len(L)] = cur[0]; L.append(x)
    VQ, VP = 32, 124
    for x in lastq: A(x)
    for ks in range(4):
        for kt in range(3):
            for half in range(2):
                A(f"ds_read_b64 {v(KF+(kt*4+ks)*4+2*half,2)}, v{VK0+half} offset:{kt*4*KP+ks*64}")
    def qb(ks, qt): return ACC + qt*32 + ks*8
    def sp(i): return ACC + (i//4)*32 + (i%4)*8 + 4
    def S(kt, qt): return sp(qt*4 + kt)
    def PB(qt): return sp(qt*4 + 3)
    OODD = {0: 140, 1: KF, 2: KF+16}
    def O(dt, qt): return qb(dt//2, qt) if dt % 2 == 0 else OODD[qt] + (dt//2)*4
    m = [23, 24, 25]; t = [26, 27, 28]
    for qt in range(3):
        cur[0] = (2-qt)*cfg.bias
        for ks in range(4):
            r = qb(ks, qt)
            for j in range(4): A(f"v_cvt_pk_bf16_f32 v{r+j}, v{r+2*j}, v{r+2*j+1}")
        for ks in range(4):
            for kt in range(3):
                c = "0" if ks == 0 else v(S(kt,qt),4)
                A(f"v_mfma_f32_16x16x32_bf16 {v(S(kt,qt),4)}, {v(KF+(kt*4+ks)*4,4)}, {v(qb(ks,qt),4)}, {c}")
    vr = []; vregs = set()
    for dt in range(8):
        for x in (f"ds_read_b64_tr_b16 {v(VQ+4*dt,2)}, v{VV+dt}", f"ds_read_b64_tr_b16 {v(VQ+4*dt+2,2)}, v{VV+dt} offset:4096",
                  f"ds_read_b64_tr_b16 {v(VP+2*dt,2)}, v{VV+dt} offset:8192"):
            i = I(x); i.r = i.r | {('x','vl')}; vr.append(i); vregs |= i.w
    lr = I(f"ds_read_b32 v{VR}, v{VRA} offset:96"); lr.r = lr.r | {('v', S(0,0))}
    lc = I(f"v_cmp_eq_u32 vcc, 0, v{VR}")
    lb = I("s_cbranch_vccnz L_vls"); lb.text = "s_cbranch_vccnz L_vls\nL_vlg:"; lb.r = {('s','vcc')}; lb.w = {('x','vl')}
    kw = I(f"ds_write_b32 v{VDA}, v{VD} offset:48"); kw.r = kw.r | vregs | {('v', KF+i) for i in range(48)}; kw.w = {('x','kw')}
    kr = I(f"ds_read_b32 v{VR}, v{VRA} offset:64"); kr.r = kr.r | {('x','kw'), ('v', PB(0))}
    kc = I(f"v_cmp_eq_u32 vcc, 0, v{VR}")
    kb = I("s_cbranch_vccnz L_kvs"); kb.text = "s_cbranch_vccnz L_kvs\nL_kvg:"; kb.r = {('s','vcc')}; kb.w = {('x','bar2')}
    stores = {}
    for qt in range(3):
        cur[0] = (2-qt)*cfg.bias
        s = [S(kt,qt)+r for kt in range(3) for r in range(4)]
        M, T = m[qt], t[qt]
        A(f"v_max3_f32 v{M}, v{s[0]}, v{s[1]}, v{s[2]}"); A(f"v_max3_f32 v{T}, v{s[3]}, v{s[4]}, v{s[5]}")
        A(f"v_max3_f32 v{M}, v{M}, v{s[6]}, v{s[7]}"); A(f"v_max3_f32 v{T}, v{T}, v{s[8]}, v{s[9]}")
        A(f"v_max3_f32 v{M}, v{M}, v{s[10]}, v{s[11]}"); A(f"v_max_f32 v{M}, v{M}, v{T}")
        if qt == 0:
            A(lr); A(lc); A(lb)
            for x in vr: A(x)
            A(kw)
        for sw in ("v_permlane16_swap_b32", "v_permlane32_swap_b32"):
            A(f"v_mov_b32 v{T}, v{M}"); A(f"{sw} v{M}, v{T}"); A(f"v_max_f32 v{M}, v{M}, v{T}")
        A(f"v_mul_f32 v{M}, s51, v{M}")
        for x in s: A(f"v_fma_f32 v{x}, v{x}, s51, -v{M}")
        for x in s: A(f"v_exp_f32 v{x}, v{x}")
        A(f"v_add_f32 v{M}, v{s[0]}, v{s[1]}"); A(f"v_add_f32 v{T}, v{s[2]}, v{s[3]}")
        for i in range(4, 12, 2):
            A(f"v_add_f32 v{M}, v{M}, v{s[i]}"); A(f"v_add_f32 v{T}, v{T}, v{s[i+1]}")
        A(f"v_add_f32 v{M}, v{M}, v{T}")
        for sw in ("v_permlane16_swap_b32", "v_permlane32_swap_b32"):
            A(f"v_mov_b32 v{T}, v{M}"); A(f"{sw} v{M}, v{T}"); A(f"v_add_f32 v{M}, v{M}, v{T}")
        A(f"v_rcp_f32 v{M}, v{M}")
        for x in s: A(f"v_mul_f32 v{x}, v{x}, v{M}")
        for j in range(4): A(f"v_cvt_pk_bf16_f32 v{PB(qt)+j}, v{s[2*j]}, v{s[2*j+1]}")
        for j in range(2): A(f"v_cvt_pk_bf16_f32 v{S(2,qt)+j}, v{s[8+2*j]}, v{s[9+2*j]}")
        if qt == 0: A(kr); A(kc); A(kb)
        for dt in range(8):
            A(f"v_mfma_f32_16x16x32_bf16 {v(O(dt,qt),4)}, {v(VQ+4*dt,4)}, {v(PB(qt),4)}, 0")
        for dt in range(8):
            A(f"v_mfma_f32_16x16x16_bf16 {v(O(dt,qt),4)}, {v(VP+2*dt,2)}, {v(S(2,qt),2)}, {v(O(dt,qt),4)}")
        for ks in range(4):
            r = qb(ks, qt); k = O(2*ks+1, qt)
            A(f"v_cvt_pk_bf16_f32 v{r}, v{r}, v{r+1}"); A(f"v_cvt_pk_bf16_f32 v{r+1}, v{r+2}, v{r+3}")
            A(f"v_cvt_pk_bf16_f32 v{r+2}, v{k}, v{k+1}"); A(f"v_cvt_pk_bf16_f32 v{r+3}, v{k+2}, v{k+3}")
            w = I(f"ds_write_b128 v{VOW}, {v(r,4)} offset:{(ks>>1)*12288+qt*2048+(ks&1)*1024}"); w.r = w.r | {('x','bar2')}
            A(w)
            stores[qt, ks] = f"buffer_store_dwordx4 {v(r,4)}, v{VOG}, {srd(SWS)}, s{54+(ks>>1)*2+(qt>>1)} offen offset:{(qt&1)*2048+(ks&1)*1024} sc1"
    cur[0] = 5000
    order = [(0,0),(0,1),(0,2),(0,3),(1,0),(1,1),(2,0),(2,1)]
    late = [(1,2),(1,3),(2,2),(2,3)]
    if not cfg.no_ostore:
        for k in order: A(stores[k])
    if cfg.sched: L = schedule(L, verbose=True, bias=bias)
    return L, ([] if cfg.no_ostore else [stores[k] for k in late])

def compute():
    L = []; A = L.append
    A("s_and_b32 s44, s7, 1"); A("s_lshr_b32 s45, s7, 1")
    A("v_and_b32 v23, 15, v0"); A("v_lshrrev_b32 v24, 4, v0"); A("v_bfe_u32 v25, v0, 2, 2")
    A("v_and_b32 v26, 3, v0"); A("v_and_b32 v27, 1, v24"); A("v_lshrrev_b32 v28, 1, v24"); A("v_lshlrev_b32 v26, 3, v26")
    A("v_lshl_add_u32 v29, v27, 2, v25")
    A("v_mul_u32_u24 v20, 1056, v29"); A("v_add_u32 v20, v20, v26")
    A("v_lshl_add_u32 v30, v28, 9, v20")
    A("s_lshl_b32 s46, s45, 8"); A(f"s_add_u32 s46, s46, {SLOT_C}"); A(f"v_add_u32 v{VA}, s46, v30")
    A("v_lshl_add_u32 v30, v28, 8, v20"); A("s_lshl_b32 s46, s45, 7"); A(f"v_add_u32 v{VM}, s46, v30"); A(f"v_mov_b32 v{VML}, v{VM}")
    A("v_lshl_add_u32 v30, v28, 7, v20"); A("s_lshl_b32 s46, s45, 6"); A(f"s_add_u32 s46, s46, {UB}"); A(f"v_add_u32 v{VU}, s46, v30")
    A("v_lshrrev_b32 v30, 1, v23"); A("v_xor_b32 v30, v30, v24"); A("v_lshlrev_b32 v30, 4, v30"); A("v_lshl_add_u32 v30, v23, 7, v30")
    A("s_mul_i32 s47, s44, 6144"); A(f"s_add_u32 s46, s47, {SLOT_C+QW}")
    A(f"v_add_u32 v{VB0}, s46, v30"); A("v_xor_b32 v30, 64, v30"); A(f"v_add_u32 v{VB1}, s46, v30")
    A("v_and_b32 v31, 3, v0")
    A(f"v_mul_u32_u24 v30, {KP}, v25"); A("v_lshl_add_u32 v30, v31, 8, v30"); A("v_lshl_add_u32 v30, v27, 3, v30")
    A(f"s_mul_i32 s46, s44, {KPB}"); A(f"s_add_u32 s46, s46, {KB}"); A("v_add_u32 v30, s46, v30")
    A("v_xor_b32 v31, v31, v28"); A(f"v_lshl_add_u32 v{VK0}, v31, 4, v30")
    A("v_xor_b32 v31, 2, v31"); A(f"v_lshl_add_u32 v{VK1}, v31, 4, v30")
    A("v_lshl_add_u32 v22, v24, 2, v25")
    A("v_lshl_add_u32 v30, v22, 8, v26")
    A(f"s_mul_i32 s46, s44, {VPB}"); A(f"s_add_u32 s46, s46, {VB}"); A("v_add_u32 v30, s46, v30")
    for dt in range(8):
        A(f"v_xor_b32 v31, {dt}, v29"); A(f"v_lshl_add_u32 v{VV+dt}, v31, 5, v30")
    A(f"v_lshlrev_b32 v{VL16}, 4, v0")
    A("s_mul_i32 s46, s45, 24576"); A("s_add_u32 s46, s46, s47")
    A(f"v_add_u32 v{VOG}, s46, v{VL16}"); A(f"v_add_u32 v{VOW}, {OB}, v{VOG}")
    A(f"s_add_u32 s46, s47, {OB}"); A(f"v_add_u32 v{VO}, s46, v{VL16}")
    for i in range(48): A(f"v_mov_b64 {v(ACC+2*i,2)}, 0")
    A("v_mov_b32 v22, 0")
    A(f"v_and_b32 v{VRA}, 7, v0"); A(f"v_lshlrev_b32 v{VRA}, 2, v{VRA}"); A(f"v_add_u32 v{VRA}, {SYNC}, v{VRA}")
    A("s_lshl_b32 s46, s7, 2"); A(f"s_add_u32 s46, s46, {SYNC+16}"); A(f"v_mov_b32 v{VDA}, s46"); A(f"v_mov_b32 v{VD}, 64")
    A("s_and_b32 s46, s2, 7"); A("s_lshl3_add_u32 s46, s46, s5")
    A("s_lshl_b32 s52, s46, 8"); A("s_lshl2_add_u32 s47, s71, s7"); A("s_lshl3_add_u32 s52, s47, s52"); A(f"s_add_u32 s52, s52, {FL1}")
    A("s_lshl2_add_u32 s46, s46, s71"); A("s_mul_i32 s54, s46, 49152")
    A("s_add_u32 s55, s54, 4096"); A("s_add_u32 s56, s54, 12288"); A("s_add_u32 s57, s54, 16384")
    A("s_lshl3_add_u32 s47, s4, s5")
    A("s_lshl2_add_u32 s46, s47, s71"); A("s_lshl2_add_u32 s46, s46, s7")
    A("s_lshl_b32 s53, s46, 7"); A("s_lshl3_add_u32 s53, s3, s53"); A(f"s_add_u32 s53, s53, {FL2}")
    A("s_lshl2_add_u32 s46, s46, s3"); A("s_mul_i32 s60, s46, 6144"); A(f"s_add_u32 s60, s60, {PART}")
    A("s_lshl4_add_u32 s46, s47, s6"); A("s_lshl2_add_u32 s46, s46, s7")
    A("s_lshl_b32 s86, s46, 3"); A(f"s_add_u32 s86, s86, {FL3}")
    A("s_mul_i32 s87, s46, 3072"); A(f"s_add_u32 s87, s87, {PART3}")
    A("s_mov_b32 s51, 0x3e0293ee")
    A(f"s_mov_b32 s48, {SLOT_C}"); A("s_mov_b32 s49, 9")
    A(f"s_mov_b32 s58, {nib(MPOS) & 0xffffffff}"); A(f"s_mov_b32 s59, {nib(MPOS) >> 32}"); A(f"s_mov_b32 s61, {-4*OSL & 0xffffffff}"); A(f"s_mov_b32 s50, {OSL}")
    A(f"s_mov_b32 s85, {(1<<cfg.FA)|(1<<cfg.FB)|(1<<cfg.F3)|(1<<cfg.LS)}")
    A("s_waitcnt lgkmcnt(0)")
    mk_srd(A, SWS, 42, WS); mk_srd(A, SDBG, 82, 256)
    A("s_add_u32 s83, s52, 128")
    A("s_add_u32 s46, s2, s7"); A("s_cmp_lg_u32 s46, 0"); A("s_cbranch_scc1 L_nn")
    A("s_memrealtime s[46:47]"); A("s_waitcnt lgkmcnt(0)"); A("s_or_b32 s46, s46, 1")
    A(f"v_mov_b32 v{VN}, s46"); A(f"v_mov_b32 v{VN+1}, s47")
    A("s_mov_b64 exec, 1")
    A(f"buffer_store_dwordx2 {v(VN,2)}, v22, {srd(SDBG)}, 0 offen sc1")
    A("s_mov_b64 exec, -1")
    A("L_nn:")
    if cfg.prio: A(f"s_setprio {cfg.prio}")
    bar(A)
    L.extend(q_reads(0, 0))
    A("s_branch L_q_h1")
    out = fix(L)
    r = q_reads(0, 0)
    g2 = [[f"v_add_u32 v{VA}, s47, v{VA}"], [r[0], f"v_add_u32 v{VB0}, s47, v{VB0}"], [r[1], f"v_add_u32 v{VB1}, s47, v{VB1}"]] + [[x] for x in r[2:]]
    H2 = ["L_q_top:"] + weave(q_mfma(1), g2)
    r = q_reads(1, 1)
    g1 = [[x] for x in r] + [[f"s_add_u32 s46, s48, {QS}", f"s_cmp_eq_u32 s46, {LDS_Q_END}"], ["s_cselect_b32 s46, 0, s46", "s_sub_u32 s47, s46, s48"],
                             ["s_mov_b32 s48, s46", "s_sub_u32 s49, s49, 1"], [] if cfg.prof else ["s_cmp_lg_u32 s49, 0"]]
    H1 = ["L_q_h1:"] + weave(q_mfma(0), g1)
    tail = ["s_waitcnt lgkmcnt(0)"] + L_(bar) + (["s_cmp_lg_u32 s49, 0"] if cfg.prof else []) + ["s_cbranch_scc1 L_q_top"]
    L = H2 + H1 + tail
    L += [f"buffer_load_dwordx2 {v(VN,2)}, v22, {srd(SDBG)}, 0 offen sc1"]
    att, late = attention(q_mfma(1))
    L += att
    L += L_(stamp, False)
    L += ["s_mov_b32 s48, 0", "s_mov_b32 s49, 0", "s_waitcnt lgkmcnt(0)", f"ds_write_b32 v{VDA}, v{VD}", f"v_add_u32 v{VDA}, 16, v{VDA}", f"v_mov_b32 v{VD}, 0",
          f"s_mov_b32 s89, {cfg.spin}", "L_p0:", f"ds_read_b32 v{VR}, v{VRA}", "s_waitcnt lgkmcnt(0)", f"v_cmp_ge_u32 vcc, s49, v{VR}",
          "s_sub_u32 s89, s89, 1", "s_cbranch_scc1 L_p0x", "s_cbranch_vccnz L_p0", "L_p0x:"]
    L += L_(stamp, False)
    L += w_reads(0, 0, True)
    salu = [["s_lshr_b64 s[58:59], s[58:59], 4"], ["s_and_b32 s46, s58, 15"], [f"s_mul_i32 s46, s46, {MSL}"], ["s_cmp_eq_u32 s48, 3"], ["s_cselect_b32 s47, s61, s50"],
            ["s_add_u32 s48, s48, 1"], ["s_cmp_eq_u32 s48, 5"], ["s_cselect_b32 s48, 0, s48"], ["s_add_u32 s49, s49, 1"]]
    def h1(own, first=False, extra=[], lim=None):
        r = w_reads(1, 1, own); M = w_mfma(0, own, first)
        n = len(M)
        k = max(5, len(r) - 6)
        r = r[:k] + [f"ds_read_b32 v{VR}, v{VRA}"] + r[k:]
        g = [([r[i]] if i < len(r) else []) + (salu[i] if i < len(salu) else []) for i in range(n)]
        for i, e in enumerate(extra): g[min(n-1, i // 2 + 2)].append(e)
        g[n-2].append(f"v_cmp_ge_u32 vcc, s49, v{VR}")
        if lim: g[n-1].append(f"s_cmp_lt_u32 s49, {lim}")
        return weave(M, g)
    def h2(own, nown, n):
        r = w_reads(0, 0, nown); M = w_mfma(1, own)
        ad = [f"v_add_u32 v{VM}, s46, v{VML}", f"v_add_u32 v{VO}, s47, v{VO}"] + ([f"v_add_u32 v{VU}, {USL}, v{VU}"] if nown else []) + [f"v_add_u32 v{VD}, 1, v{VD}"]
        g = [([r[i-1]] if 1 <= i <= len(r) else []) + ([ad[i]] if i < len(ad) else []) for i in range(len(M))]
        g[-1].append(f"ds_write_b32 v{VDA}, v{VD}")
        g[0] += [f"s_cbranch_vccnz L_spin{n}", f"L_go{n}:"]
        g[5] += ["s_bitcmp1_b32 s85, s49"]
        g[6] += [f"s_cbranch_scc1 L_flag{n}", f"L_gf{n}:"]
        return weave(M, g)
    def top(n): return L_(stamp, False) + (["s_lshl_b64 s[96:97], s[96:97], 4"] if cfg.prof else [])
    def sig(so):
        if cfg.ssig: return [f"v_readfirstlane_b32 s92, v{VN}", f"v_readfirstlane_b32 s93, v{VN+1}", "s_nop 3", f"s_atomic_swap_x2 s[92:93], s[28:29], s{so}"]
        return ["s_mov_b64 exec, 1", f"buffer_store_dwordx2 {v(VN,2)}, v22, {srd(SWS)}, s{so} offen sc1", "s_mov_b64 exec, -1"]
    def flagblk(n):
        F = [f"L_flag{n}:"]
        if n == 0 and cfg.LS != cfg.FA: F += [f"s_cmp_eq_u32 s49, {cfg.LS}", f"s_cbranch_scc1 L_ls{n}"]
        F += ["s_waitcnt vmcnt(0)"]
        if n == 2 and cfg.FB > 4:
            F += [f"s_cmp_eq_u32 s49, {cfg.FB}", "s_cselect_b32 s84, s83, s86"]
        elif n < 2:
            F += [f"s_cmp_eq_u32 s49, {cfg.FA}", "s_cselect_b32 s84, 0, 128", "s_add_u32 s84, s84, s52"]
            if not cfg.nosync:
                F += [f"s_mov_b32 s89, {cfg.spin}", f"L_fn{n}:", f"v_cmp_ne_u32 s[90:91], 0, v{VN}", "s_sub_u32 s89, s89, 1", f"s_cbranch_scc1 L_fg{n}", "s_nop 2", "s_cmp_lg_u32 s90, 0", f"s_cbranch_scc1 L_fg{n}",
                      f"buffer_load_dwordx2 {v(VN,2)}, v22, {srd(SDBG)}, 0 offen sc1", "s_waitcnt vmcnt(0)", f"s_branch L_fn{n}", f"L_fg{n}:"]
        else:
            F += ["s_mov_b32 s84, s86"]
        F += sig(84)
        if n == 0: F += [f"L_ls{n}:", f"s_cmp_eq_u32 s49, {cfg.LS}", f"s_cbranch_scc0 L_fl{n}"] + late + [f"L_fl{n}:"]
        F += L_(stamp, False) + [f"s_branch L_gf{n}"]
        F += [f"L_spin{n}:"] + (["s_ff1_i32_b64 s98, vcc", "s_add_u32 s98, s98, 1", "s_or_b32 s96, s96, s98"] if cfg.prof else []) + \
             [f"s_mov_b32 s89, {cfg.spin}", f"L_sp{n}:", f"ds_read_b32 v{VR}, v{VRA}", "s_waitcnt lgkmcnt(0)", f"v_cmp_ge_u32 vcc, s49, v{VR}",
              "s_sub_u32 s89, s89, 1", f"s_cbranch_scc1 L_go{n}", f"s_cbranch_vccnz L_sp{n}", f"s_branch L_go{n}"]
        return F
    assert cfg.FA <= cfg.LS < cfg.FB and cfg.LS < 4 < cfg.F3 and cfg.F3 != cfg.FB
    uepi = []
    for qt in range(3):
        a, b = a2(4, qt), a2(5, qt)
        uepi += [f"v_cvt_pk_bf16_f32 v{PKU+4*qt}, v{a}, v{a+1}", f"v_cvt_pk_bf16_f32 v{PKU+4*qt+1}, v{a+2}, v{a+3}",
                 f"v_cvt_pk_bf16_f32 v{PKU+4*qt+2}, v{b}, v{b+1}", f"v_cvt_pk_bf16_f32 v{PKU+4*qt+3}, v{b+2}, v{b+3}",
                 f"buffer_store_dwordx4 {v(PKU+4*qt,4)}, v{VL16}, {srd(SWS)}, s87 offen offset:{qt*1024} sc1"]
    L += h1(True, True)
    L += ["L_o_top:"] + top(0) + h2(True, True, 0) + h1(True, lim=4) + ["s_cbranch_scc1 L_o_top"]
    L += top(1) + h2(True, False, 1) + h1(False, extra=uepi)
    L += ["L_r_top:"] + top(2) + h2(False, False, 2) + h1(False, lim=16) + ["s_cbranch_scc1 L_r_top"]
    L += L_(stamp, False)
    a = P2[1]
    def fin(own):
        F = []
        for i in range(6):
            qt = i >> 1
            for f in (2*(i&1), 2*(i&1)+1):
                F.append(f"v_mfma_f32_16x16x32_bf16 {v(a2(f,qt),4)}, {v(a+4*f,4)}, {v(a+24+4*qt,4)}, {v(a2(f,qt),4)}")
        for i in range(6):
            x, y = a2(2*(i&1), i>>1), a2(2*(i&1)+1, i>>1)
            F += [f"v_cvt_pk_bf16_f32 v{PK+4*i}, v{x}, v{x+1}", f"v_cvt_pk_bf16_f32 v{PK+4*i+1}, v{x+2}, v{x+3}",
                  f"v_cvt_pk_bf16_f32 v{PK+4*i+2}, v{y}, v{y+1}", f"v_cvt_pk_bf16_f32 v{PK+4*i+3}, v{y+2}, v{y+3}"]
            if own: F.append(f"ds_write_b128 v{VL16}, {v(PK+4*i,4)} offset:{i*1024}")
            else: F.append(f"buffer_store_dwordx4 {v(PK+4*i,4)}, v{VL16}, {srd(SWS)}, s{60 + (i>>2)} offen offset:{(i&3)*1024} sc1")
        return schedule(F)
    L += ["s_waitcnt lgkmcnt(0)", "s_add_u32 s61, s60, 4096", "s_cmp_eq_u32 s7, s3", "s_cbranch_scc1 L_own"]
    L += fin(False) + L_(stamp) + ["s_waitcnt vmcnt(0)", "L_own2:"] + L_(stamp)
    L += sig(53)
    dump_stamps(L.append)
    L += ["s_endpgm"]
    out += fix(L)
    out += fix(["L_own:", f"v_add_u32 v{VL16}, {LOWN}, v{VL16}", f"v_mov_b32 v{VDA}, {SYNC+48}"] + fin(True) + ["s_waitcnt lgkmcnt(0)", f"ds_write_b32 v{VDA}, v{VD}"] + L_(stamp) + ["s_branch L_own2"])
    for n in range(3): out += fix(flagblk(n))
    out += fix(["L_kvs:", f"s_mov_b32 s89, {cfg.spin}", "L_kvs2:", f"ds_read_b32 v{VR}, v{VRA} offset:64", "s_waitcnt lgkmcnt(0)", f"v_cmp_eq_u32 vcc, 0, v{VR}",
                "s_sub_u32 s89, s89, 1", "s_cbranch_scc1 L_kvg", "s_cbranch_vccnz L_kvs2", "s_branch L_kvg"])
    out += fix(["L_vls:", f"s_mov_b32 s89, {cfg.spin}", "L_vls2:", f"ds_read_b32 v{VR}, v{VRA} offset:96", "s_waitcnt lgkmcnt(0)", f"v_cmp_eq_u32 vcc, 0, v{VR}",
                "s_sub_u32 s89, s89, 1", "s_cbranch_scc1 L_vlg", "s_cbranch_vccnz L_vls2", "s_branch L_vlg"])
    return out

def main_kernel():
    ins = fix(L_(prologue)) + compute() + loader() + [I("L_end:")]
    return text(ins)
def build(path):
    hdr = open("concat_heads__gqa_block_cached__gqa_block_cached__near_ridge.s.ref").read().split("; Override launch")[0]
    s = hdr + f"; @launch grid=(256,1,1) block=(512,1,1) lds=163840\n"
    s += '.amdgcn_target "amdgcn-amd-amdhsa--gfx950"\n'
    s += mkkernel(KN, main_kernel(), vgpr=256, sgpr=102, accum=256)
    open(path, "w").write(s)
if __name__ == "__main__":
    out = sys.argv[1]
    for a in sys.argv[2:]:
        k, val = a.split("=")
        cur = getattr(cfg, k)
        setattr(cfg, k, (val == "1") if isinstance(cur, bool) else type(cur)(val.replace("_"," ") if isinstance(cur,str) else val))
    build(out)
```

```python
import re
TRANS = ("v_exp_f32","v_log_f32","v_rcp_f32","v_rsq_f32","v_sqrt_f32","v_sin_f32","v_cos_f32")
def regs(tok):
    tok = tok.strip()
    tok = tok.lstrip('-')
    if tok.startswith('abs(') : tok = tok[4:-1]
    if tok.startswith('|'): tok = tok.strip('|')
    m = re.fullmatch(r'([vsa])(\d+)', tok)
    if m: return {(m.group(1), int(m.group(2)))}
    m = re.fullmatch(r'([vsa])\[(\d+):(\d+)\]', tok)
    if m: return {(m.group(1), i) for i in range(int(m.group(2)), int(m.group(3))+1)}
    if tok == 'vcc': return {('s','vcc')}
    if tok == 'm0': return {('s','m0')}
    if tok == 'exec': return {('s','exec')}
    return set()
class I:
    def __init__(self, text):
        self.text = text.strip()
        t = self.text.split(';')[0].strip()
        self.label = t.endswith(':')
        self.raw = t.startswith('.') or t == ''
        parts = t.split(None, 1)
        self.op = parts[0] if parts else ''
        ops = []
        if len(parts) > 1:
            ops = [o.strip() for o in parts[1].split(',')]
            last = ops[-1].split()
            self.mods = last[1:]
            ops[-1] = last[0]
        else: self.mods = []
        self.ops = ops
        op = self.op
        self.kind = 'other'; self.w = set(); self.r = set(); self.srcC = set(); self.srcAB = set()
        R = [regs(o) for o in ops]
        U = lambda l: set().union(*l) if l else set()
        if self.label or self.raw: self.kind = 'label'
        elif op.startswith('v_mfma'):
            self.kind = 'mfma'; self.w = R[0]; self.srcAB = R[1] | R[2]; self.srcC = R[3]; self.r = self.srcAB | self.srcC
            self.passes = 8 if '32x32' in op else 4
        elif op.startswith('ds_read'):
            self.kind = 'dsr'; self.w = R[0]; self.r = U(R[1:])
        elif op.startswith('ds_write'):
            self.kind = 'dsw'; self.r = U(R)
        elif op.startswith('buffer_load') or op.startswith('global_load'):
            if 'lds' in self.mods:
                self.kind = 'dma'; self.r = U(R) | {('s','m0')}
            else:
                self.kind = 'vld'; self.w = R[0]; self.r = U(R[1:])
        elif op.startswith('buffer_store') or op.startswith('global_store'):
            self.kind = 'vst'; self.r = U(R)
            self.data = R[0] if op.startswith('buffer') else R[1]
            self.wide = op.endswith('x4') or op.endswith('x3')
        elif op.startswith('buffer_atomic') or op.startswith('global_atomic'):
            self.kind = 'vst'; self.r = U(R); self.data=set(); self.wide=False
            if 'sc0' in self.mods: self.kind='vld'; self.w = R[0]
        elif op.startswith('buffer_'):
            self.kind = 'vmisc'
        elif op.startswith('v_permlane') and 'swap' in op:
            self.kind = 'valu'; self.w = U(R); self.r = U(R); self.perm = True
        elif op.startswith('v_'):
            self.kind = 'valu'; self.w = R[0]; self.r = U(R[1:])
            if op.startswith('v_fmac') or op.startswith('v_dot2c') or op.startswith('v_writelane'): self.r |= R[0]
            if op.startswith('v_cndmask') and len(ops) == 3: self.r |= {('s','vcc')}
            if op.startswith(('v_add_co','v_addc_co','v_sub_co')): self.w |= R[1]; self.r = U(R[2:])
        elif op.startswith('s_'):
            self.kind = 'salu'
            if op in ('s_nop','s_waitcnt','s_barrier','s_branch','s_endpgm','s_setprio','s_sleep','s_setpc_b64') or op.startswith(('s_cbranch','s_cmp','s_bitcmp')):
                self.r = U(R)
            elif op.startswith(('s_load','s_memtime','s_memrealtime','s_buffer_load','s_atomic')):
                self.kind = 'smem'; self.w = R[0]; self.r = U(R[1:])
            else:
                self.w = R[0] if R else set(); self.r = U(R[1:])
                if 'saveexec' in op: self.w |= {('s','exec')}
        self.trans = op.split('_e32')[0].split('_e64')[0] in TRANS
        self.perm = op.startswith('v_permlane')
        self.dpp = 'dpp' in op
        self.rfl = op.startswith(('v_readfirstlane','v_readlane'))
    def states(self):
        if self.kind == 'label': return 0
        if self.op == 's_nop': return int(self.ops[0], 0) + 1
        return 1
def need(p, c):
    n = 0
    vw = {x for x in p.w if x[0] in 'va'}
    sw = {x for x in p.w if x[0] == 's'}
    if p.kind == 'valu':
        if c.kind == 'mfma' and vw & c.r: n = max(n, 2)
        if c.kind == 'mfma' and ('s','exec') in p.w: n = max(n, 4)
        if c.kind == 'valu':
            if p.trans and not c.trans and vw & c.r: n = max(n, 1)
            if c.perm and vw & c.r: n = max(n, 2)
            if c.dpp and vw & c.r: n = max(n, 2)
            if c.rfl and vw & c.r: n = max(n, 1)
            if sw & c.r: n = max(n, 2)
        if c.kind in ('vld','vst','dma') and sw & c.r: n = max(n, 5)
        if c.kind == 'salu' and sw & c.r: n = max(n, 2)
    if p.kind == 'mfma':
        P = p.passes
        big = {4:8, 8:12}[P]; ovl = {4:6, 8:10}[P]; war = {4:3, 8:7}[P]
        if c.kind == 'mfma':
            if p.w & c.srcAB: n = max(n, big)
            if p.w & c.srcC:
                if not (p.w == c.srcC and p.op == c.op): n = max(n, ovl)
            if p.w & c.w and not (p.w & c.srcC) and p.op != c.op: n = max(n, ovl)
        elif c.kind in ('valu','dsr','dsw','vld','vst','dma'):
            if p.w & (c.r | c.w): n = max(n, big)
            if c.kind == 'valu' and p.srcC & c.w: n = max(n, war)
    if p.kind == 'salu' and ('s','m0') in p.w and c.kind == 'dma': n = max(n, 1)
    if p.kind == 'vst' and p.wide and p.data & c.w: n = max(n, 2)
    return n
def fix(lines, track_vm=False, pre=None):
    out = list(pre) if pre else []
    npre = len(out)
    lq = []
    vq = []
    smem = False
    for t in lines:
        c = t if isinstance(t, I) else I(t)
        if c.kind == 'label':
            out.append(c); continue
        if c.op == 's_waitcnt':
            m = re.search(r'lgkmcnt\((\d+)\)', c.text)
            if m:
                k = int(m.group(1)); lq = lq[len(lq)-k:] if k < len(lq) and k > 0 else ([] if k == 0 else lq)
                if k == 0: smem = False
            m = re.search(r'vmcnt\((\d+)\)', c.text)
            if m:
                k = int(m.group(1)); vq = vq[len(vq)-k:] if k < len(vq) and k > 0 else ([] if k == 0 else vq)
        touched = c.r | c.w
        idx = -1
        for i, d in enumerate(lq):
            if d & touched: idx = i
        if idx >= 0:
            k = len(lq) - 1 - idx
            if smem: k = 0
            k = min(k, 15)
            out.append(I(f"s_waitcnt lgkmcnt({k})"))
            lq = lq[len(lq)-k:] if k > 0 else []
            if k == 0: smem = False
        if track_vm:
            idx = -1
            for i, d in enumerate(vq):
                if d & touched: idx = i
            if idx >= 0:
                k = min(len(vq) - 1 - idx, 63)
                out.append(I(f"s_waitcnt vmcnt({k})"))
                vq = vq[len(vq)-k:] if k > 0 else []
        dist = 0; req = 0
        for p in reversed(out):
            if dist >= 20: break
            n = need(p, c)
            if n - dist > req: req = n - dist
            dist += p.states()
        while req > 0:
            k = min(req, 16)
            out.append(I(f"s_nop {k-1}")); req -= k
        out.append(c)
        if c.kind == 'dsr': lq.append(set(c.w))
        elif c.kind == 'dsw': lq.append(set())
        elif c.kind == 'smem' and not c.op.startswith(('s_memtime','s_memrealtime')): smem = True
        if c.kind == 'vld': vq.append(set(c.w))
        elif c.kind in ('vst','dma'): vq.append(set())
    return out[npre:]
def text(ins):
    return "\n".join((i.text if (i.label or i.raw) else "  " + i.text) for i in ins)
def interleave(main, fill, start=0, every=1, per=1):
    out = []; fi = 0
    for i, m in enumerate(main):
        out.append(m)
        if i >= start and (i - start) % every == 0:
            for _ in range(per):
                if fi < len(fill): out.append(fill[fi]); fi += 1
    out.extend(fill[fi:])
    return out

def cost(i):
    if i.kind == 'mfma': return 4
    if i.kind in ('dsr','dsw'): return 8
    if i.kind in ('vst','vld','dma'): return 8
    if i.trans or i.perm: return 9
    if i.op.startswith('v_cvt_pk'): return 5
    if i.kind == 'valu': return 4
    return 4
def lat(p, c):
    if p.kind == 'mfma':
        if c.kind == 'mfma' and (p.w & c.srcC) and not (p.w & c.srcAB): return 16
        if p.w & (c.r | c.w): return 36
        return 4
    if p.kind == 'dsr': return 130 if p.w & (c.r | c.w) else 8
    return cost(p)
def schedule(lines, pre=None, window=10**9, verbose=False, bias=None):
    bias = bias or {}
    ins = [x if isinstance(x, I) else I(x) for x in lines]
    n = len(ins)
    preds = [[] for _ in range(n)]; succs = [[] for _ in range(n)]
    for j in range(n):
        c = ins[j]
        for i in range(j):
            p = ins[i]
            dep = (p.w & c.r) or (p.w & c.w) or (p.r & c.w)
            if not dep and p.kind in ('vst',) and c.kind in ('vst',): dep = True
            if not dep and p.kind == 'dsw' and c.kind == 'dsw': dep = True
            if dep: preds[j].append(i); succs[i].append(j)
    prio = [0]*n
    for i in reversed(range(n)):
        prio[i] = cost(ins[i]) + max([ (lat(ins[i], ins[s]) if (ins[i].w & (ins[s].r|ins[s].w)) else 0) + prio[s] for s in succs[i]] + [0])
    done = [False]*n; tiss = [0]*n
    out = list(pre) if pre else []
    npre = len(out)
    t = 0; mf_free = 0; valu_ok = 0; lastvalu = False
    left = n
    npred = [len(p) for p in preds]
    ready = [i for i in range(n) if npred[i] == 0]
    lastk = None
    while left:
        best = None
        for i in ready:
            c = ins[i]
            st = t
            for p in preds[i]:
                if ins[p].w & (c.r | c.w): st = max(st, tiss[p] + lat(ins[p], c))
            st0 = st
            if c.kind == 'mfma': st = max(st, mf_free, t + (4 if lastvalu else 0))
            if c.kind == 'valu': st = max(st, valu_ok)
            dist = 0; req = 0
            for p in reversed(out):
                if dist >= 14: break
                k = need(p, c)
                if k - dist > req: req = k - dist
                dist += p.states()
            st = max(st, t + 4*req)
            late = max(0, st - t)
            if c.kind == 'mfma':
                cls = 0 if (late <= 4 and req == 0 and lastk != 'mfma') else 3
            elif c.kind in ('dsw','vst'):
                cls = 1 if late == 0 else 5
            elif c.kind in ('dsr','salu'):
                cls = 1 if (lastk == 'mfma' and late == 0) else (4 if late == 0 else 5)
            else:
                cls = 2 if late <= (4 if lastk == 'mfma' else 0) else 5
            if cls >= 3 and late > 0: key = (5, late // 4, -prio[i], i)
            else: key = (cls, 0, -prio[i] - bias.get(i, 0), i)
            if best is None or key < best[0]: best = (key, i, st)
        _, i, st = best
        c = ins[i]
        tiss[i] = st
        t = st + cost(c)
        if c.kind == 'mfma': mf_free = st + 16; valu_ok = st + 8; lastvalu = False
        elif c.kind == 'valu': lastvalu = True
        else: lastvalu = False
        lastk = c.kind
        out.append(c); ready.remove(i); left -= 1
        for s in succs[i]:
            npred[s] -= 1
            if npred[s] == 0: ready.append(s)
    if verbose: print("schedule estimate cycles:", t)
    return out[npre:]
```

```python
import sys
from asmlib import *
from mb_common import kernel as mkkernel
KN = "concat_heads__gqa_block_cached__gqa_block_cached__near_ridge_kernel"
WS = 268435456
class Cfg:
    prof = False
    ld_x = ""; ld_w = ""; ld_kv = ""; ld_wo = ""; ld_o = "sc1"
    FA = 1; FB = 3; F3 = 7
    sched = True; bias = 1000
    spin = 2000000
    prio = 1; slp = 2
    ssig = True; spoll = True; vpre = 4; rotm = True; LS = 1; allpoll = True
    vspread = True; stg1 = True; u0first = True; u0hard = True; qorder = 0; worder = 0
    no_dma = False; nosync = False; no_ostore = False
cfg = Cfg()
QW = 33792; QS = 46080; LDS_Q_END = 138240; SLOT_C = 92160
KB = 112128; KPB = 13056; KP = 1088
VB = 138240; VPB = 12288
OR0 = 102400; OSL = 12288; OB = OR0 + OSL
MSL = 16896; UB = 4*MSL; USL = 8448
LOWN = 0
MPOS = [0,1,2,3,0,4,1,2,5,3,0,4,1,2,5,3]
MTHR = [0,0,0,0,1,2,2,3,4,4,5,6,7,8,9,10]
def nib(t): return sum(x << (4*i) for i, x in enumerate(t))
SYNC = 101376
PART = 256*49152; PART3 = PART + 1024*6144; FL1 = PART3 + 256*12288; FL2 = FL1 + 64*256; FL3 = FL2 + 256*128
SX, SK, SV, SWQ, SWO, SWS, SOUT, SDBG = 8, 12, 16, 20, 24, 28, 72, 76
def srd(r): return f"s[{r}:{r+3}]"
def v(a, n=1): return f"v{a}" if n == 1 else f"v[{a}:{a+n-1}]"
PV = 1
def flush(A, wait=True):
    if wait: A("s_waitcnt lgkmcnt(0)")
    A("s_sub_u32 s64, s64, s66"); A("s_lshl_b64 exec, 1, s70")
    A(f"v_mov_b32 v{PV}, s64"); A("s_mov_b64 exec, -1"); A("s_add_u32 s70, s70, 1")
def stamp(A, wait=True):
    if cfg.prof:
        flush(A, wait); A("s_memtime s[64:65]")
def rt(k):
    return [f"s_memrealtime s[{8+4*k}:{9+4*k}]", f"s_memtime s[{10+4*k}:{11+4*k}]"] if cfg.prof else []
def bar(A):
    if cfg.prof: flush(A)
    A("s_barrier")
    if cfg.prof: A("s_memtime s[64:65]")
def L_(f, *a):
    L = []; f(L.append, *a); return L
def mk_srd(A, r, ptr, size):
    A(f"s_mov_b32 s{r}, s{ptr}"); A(f"s_mov_b32 s{r+1}, s{ptr+1}")
    A(f"s_mov_b32 s{r+2}, {size}"); A(f"s_mov_b32 s{r+3}, 0x20000")
def prologue(A):
    A("s_cmp_ge_u32 s2, 256"); A("s_cbranch_scc1 L_end")
    A("s_bfe_u32 s4, s2, 0x10002")
    A("s_mul_i32 s44, s4, 40"); A("s_add_u32 s46, s0, s44"); A("s_addc_u32 s47, s1, 0")
    A("s_load_dwordx8 s[32:39], s[46:47], 0")
    A("s_load_dwordx2 s[40:41], s[46:47], 32")
    A("s_load_dwordx4 s[80:83], s[0:1], 80")
    A("s_load_dwordx2 s[42:43], s[0:1], 96")
    if cfg.prof:
        A("s_memrealtime s[62:63]"); A("s_memtime s[66:67]"); A("s_memtime s[64:65]"); A("s_mov_b32 s70, 2"); A("s_mov_b64 s[96:97], 0")
    A("v_lshrrev_b32 v1, 6, v0")
    A("s_bfe_u32 s5, s2, 0x30003")
    A("v_readfirstlane_b32 s7, v1")
    A("s_lshr_b32 s71, s2, 6")
    A("s_and_b32 s3, s2, 3")
    A("s_lshl2_add_u32 s6, s3, s71")
    A("v_and_b32 v0, 63, v0")
    A("s_cmp_ge_u32 s7, 4"); A("s_cbranch_scc1 L_loader")
def dump_stamps(A):
    if not cfg.prof: return
    stamp(A)
    A(f"v_writelane_b32 v{PV}, s62, 0"); A(f"v_writelane_b32 v{PV}, s96, 61"); A(f"v_writelane_b32 v{PV}, s97, 62")
    A("s_memrealtime s[62:63]"); A("s_waitcnt lgkmcnt(0)"); A(f"v_writelane_b32 v{PV}, s62, 63")
    A("s_getreg_b32 s61, hwreg(HW_REG_XCC_ID)")
    A("s_lshl_b32 s61, s61, 8"); A("s_add_u32 s61, s61, s70")
    A(f"v_writelane_b32 v{PV}, s61, 1")
    A("v_lshlrev_b32 v3, 2, v0")
    A("s_lshl_b32 s61, s2, 11"); A("s_lshl_b32 s60, s7, 8"); A("s_add_u32 s61, s61, s60")
    A(f"s_add_u32 s61, s61, {WS-524288}")
    A(f"buffer_store_dword v{PV}, v3, s[28:31], s61 offen")
def poll(A, tag, voff, soff, off=0):
    if cfg.nosync: return
    A(f"s_mov_b32 s89, {cfg.spin}")
    A(f"L_poll{tag}:")
    A(f"buffer_load_dwordx2 v[30:31], v{voff}, {srd(SWS)}, s{soff} offen offset:{off} sc1")
    A("s_waitcnt vmcnt(0)")
    A("v_cmp_eq_u64 vcc, s[58:59], v[30:31]")
    A("s_sub_u32 s89, s89, 1")
    A("s_cbranch_scc1 L_pollx" + tag)
    A("s_nop 2")
    A("s_cmp_eq_u64 vcc, exec")
    A(f"s_cbranch_scc0 L_poll{tag}")
    A(f"L_pollx{tag}:")
def get_nonce_s(A, tag):
    A(f"s_mov_b32 s89, {cfg.spin}")
    A("v_mov_b32 v29, 0")
    A(f"L_non{tag}:")
    A(f"buffer_load_dwordx2 v[30:31], v29, {srd(SDBG)}, 0 offen sc1")
    A("s_waitcnt vmcnt(0)")
    A("v_readfirstlane_b32 s58, v30"); A("v_readfirstlane_b32 s59, v31")
    A("s_sub_u32 s89, s89, 1")
    A(f"s_cbranch_scc1 L_nonx{tag}")
    A("s_cmp_eq_u32 s58, 0")
    A(f"s_cbranch_scc1 L_non{tag}")
    A(f"L_nonx{tag}:")
def lds_wait(A, tag, vaddr, sneed):
    A(f"s_mov_b32 s89, {cfg.spin}")
    A(f"L_lw{tag}:")
    A(f"ds_read_b32 v30, v{vaddr}")
    A("s_waitcnt lgkmcnt(0)")
    A(f"v_cmp_gt_u32 vcc, {sneed}, v30")
    A("s_sub_u32 s89, s89, 1")
    A(f"s_cbranch_scc1 L_lwx{tag}")
    A(f"s_cbranch_vccz L_lwx{tag}")
    A(f"s_sleep {cfg.slp}")
    A(f"s_branch L_lw{tag}")
    A(f"L_lwx{tag}:")
def spoll(A, tag, soff, off, n):
    if cfg.nosync: return
    A(f"s_mov_b32 s89, {cfg.spin}")
    A(f"s_add_u32 s88, s{soff}, {off}")
    if n == 16: A("s_add_u32 s87, s88, 64")
    A(f"L_sp{tag}:")
    if n == 16:
        A("s_load_dwordx16 s[8:23], s[28:29], s88 glc"); A("s_load_dwordx16 s[32:47], s[28:29], s87 glc")
        regs = list(range(8, 24, 2)) + list(range(32, 48, 2))
    else:
        A("s_load_dwordx8 s[8:15], s[28:29], s88 glc"); regs = list(range(8, 16, 2))
    A("s_waitcnt lgkmcnt(0)")
    for r in regs: A(f"s_xor_b64 s[{r}:{r+1}], s[{r}:{r+1}], s[58:59]")
    for r in regs[1:]: A(f"s_or_b64 s[8:9], s[8:9], s[{r}:{r+1}]")
    A(f"s_cbranch_scc0 L_spx{tag}")
    A("s_sub_u32 s89, s89, 1")
    A(f"s_cbranch_scc0 L_sp{tag}")
    A(f"L_spx{tag}:")
def get_nonce_ss(A, tag):
    A(f"s_mov_b32 s89, {cfg.spin}")
    A(f"L_non{tag}:")
    A("s_load_dwordx2 s[58:59], s[82:83], 0 glc"); A("s_waitcnt lgkmcnt(0)")
    A("s_cmp_lg_u32 s58, 0"); A(f"s_cbranch_scc1 L_nonx{tag}")
    A("s_sub_u32 s89, s89, 1"); A(f"s_cbranch_scc0 L_non{tag}")
    A(f"L_nonx{tag}:")
STG = 64
def stage_index(A, j, dst):
    A(f"s_add_u32 s44, s48, {4*j}"); A("s_mul_i32 s45, s44, 86"); A("s_lshr_b32 s45, s45, 8")
    A("s_mul_i32 s46, s45, 3"); A("s_sub_u32 s44, s44, s46"); A("s_add_u32 s44, s44, s71"); A("s_add_u32 s44, s44, 1"); A("s_and_b32 s44, s44, 3")
    A("s_lshl_b32 s45, s45, 3"); A("s_lshr_b32 s45, 0x03010200, s45"); A("s_and_b32 s45, s45, 3"); A(f"s_lshl2_add_u32 s{dst}, s44, s45")
def stage_loads(A, j):
    A(f"s_mul_i32 s44, s{90+j}, 73728"); A("s_add_u32 s44, s44, s95")
    for i in range(16):
        if i % 4 == 0 and i: A(f"s_add_u32 s44, s44, {4*1152 if i != 8 else 28*1152}")
        A(f"buffer_load_dwordx4 {v(STG+64*j+4*i,4)}, v16, {srd(SWO)}, s44 offen offset:{(i%4)*1152} {cfg.ld_wo}")

def loader():
    L = []; A = L.append
    A("L_loader:")
    A("s_and_b32 s48, s7, 3")
    A("v_lshrrev_b32 v1, 5, v0"); A("v_lshlrev_b32 v1, 17, v1")
    A("v_and_b32 v2, 31, v0"); A("v_lshl_add_u32 v10, v2, 4, v1")
    A("s_and_b32 s57, s48, 1"); A("s_lshr_b32 s49, s48, 1")
    A("s_lshl_b32 s50, s6, 9"); A("s_lshl_b32 s44, s57, 15"); A("s_add_u32 s50, s50, s44")
    A("s_lshl_b32 s44, s49, 18"); A("s_add_u32 s50, s50, s44")
    A("s_mul_i32 s52, s48, 8448")
    A("v_lshrrev_b32 v1, 3, v0"); A("v_mul_u32_u24 v1, 1152, v1")
    A("v_and_b32 v2, 7, v0"); A("v_lshrrev_b32 v3, 4, v0"); A("v_xor_b32 v2, v2, v3")
    A("s_lshl_b32 s44, s57, 2"); A("v_xor_b32 v2, s44, v2")
    A("v_lshl_add_u32 v11, v2, 4, v1")
    A("v_xor_b32 v2, 4, v2"); A("v_lshl_add_u32 v12, v2, 4, v1")
    A("s_mul_i32 s51, s5, 110592"); A("s_mul_i32 s44, s48, 27648"); A("s_add_u32 s51, s51, s44")
    A("s_mul_i32 s53, s48, 3072"); A(f"s_add_u32 s53, s53, {QW}")
    A(f"s_mov_b32 s55, {SLOT_C}")
    A("s_mov_b32 s61, 0"); A("s_mov_b32 s88, 0")
    A("s_mov_b32 s22, 4718592"); A("s_mov_b32 s23, 0x20000"); A("s_mov_b32 s10, 884736"); A("s_mov_b32 s11, 0x20000")
    A("s_waitcnt lgkmcnt(0)")
    A("s_mov_b32 s20, s38"); A("s_mov_b32 s21, s39"); A("s_mov_b32 s8, s32"); A("s_mov_b32 s9, s33")
    stamp(A)
    A("L_lq:")
    A("s_mov_b32 s44, s50"); A("s_add_u32 m0, s55, s52")
    for jj in range(8):
        if jj:
            A(f"s_add_u32 m0, m0, 1056"); A(f"s_add_u32 s44, s44, {8192 if jj != 4 else 5*8192}")
        else: A("s_add_u32 s50, s50, 524288")
        A(f"buffer_load_dwordx4 v10, {srd(SWQ)}, s44 offen {cfg.ld_w} lds")
    A("s_add_u32 m0, s55, s53"); A("s_mov_b32 s45, s51")
    for jj in range(3):
        if jj:
            A("s_add_u32 m0, m0, 1024"); A(f"s_add_u32 s45, s45, {8*1152}")
        A(f"buffer_load_dwordx4 v{11 + (jj&1)}, {srd(SX)}, s45 offen {cfg.ld_x} lds")
    A("s_add_u32 s51, s51, 128")
    A(f"s_add_u32 s55, s55, {QS}"); A(f"s_cmp_eq_u32 s55, {LDS_Q_END}"); A("s_cselect_b32 s55, 0, s55")
    A("s_add_u32 s61, s61, 1")
    A("s_cmp_eq_u32 s88, 2"); A("s_cbranch_scc1 L_lq_next")
    A("s_cmp_eq_u32 s88, 1"); A("s_cbranch_scc1 L_setup")
    A("s_cmp_lt_u32 s61, 2"); A("s_cbranch_scc1 L_lq")
    A("s_mov_b32 s88, 1")
    stamp(A)
    A("s_waitcnt vmcnt(11)"); bar(A)
    A("s_branch L_lq")
    A("L_setup:")
    A("s_mov_b32 s88, 2")
    mk_srd(A, SK, 34, 3145728); mk_srd(A, SV, 36, 3145728); mk_srd(A, SWO, 40, 4718592)
    mk_srd(A, SWS, 42, WS); mk_srd(A, SOUT, 80, 1769472); mk_srd(A, SDBG, 82, 256)
    A("v_lshrrev_b32 v1, 4, v0"); A("v_and_b32 v2, 15, v0"); A("v_xor_b32 v3, v2, v1")
    A("v_lshlrev_b32 v3, 4, v3"); A("v_lshl_add_u32 v13, v1, 8, v3")
    A(f"s_mul_i32 s44, s49, {KPB}"); A(f"s_mul_i32 s45, s57, {6*KP}"); A("s_add_u32 s44, s44, s45"); A(f"s_add_u32 s44, s44, {KB}")
    A("v_add_u32 v13, s44, v13")
    A("v_mul_u32_u24 v16, 9216, v1"); A("v_lshl_add_u32 v16, v2, 4, v16")
    A("v_lshlrev_b32 v26, 3, v2")
    A("v_bfe_u32 v2, v0, 1, 3"); A("v_xor_b32 v2, v2, v1"); A("v_lshlrev_b32 v2, 5, v2")
    A("v_and_b32 v3, 1, v0"); A("v_lshl_add_u32 v2, v3, 4, v2"); A("v_lshl_add_u32 v14, v1, 8, v2")
    A("v_lshrrev_b32 v1, 3, v0"); A("v_mul_u32_u24 v1, 9216, v1"); A("v_and_b32 v2, 7, v0"); A("v_lshl_add_u32 v17, v2, 4, v1")
    A("s_lshl1_add_u32 s56, s5, s49"); A("s_lshl4_add_u32 s56, s56, s6"); A("s_mul_i32 s56, s56, 12288")
    A("s_mul_i32 s44, s57, 6144"); A("s_add_u32 s56, s56, s44")
    A("s_mov_b32 s84, s56")
    A(f"s_mul_i32 s85, s49, {VPB}"); A("s_add_u32 s85, s85, s44"); A(f"s_add_u32 s85, s85, {VB}")
    A("v_lshlrev_b32 v25, 4, v0")
    A("v_and_b32 v18, 3, v0"); A("v_lshlrev_b32 v18, 2, v18"); A(f"v_add_u32 v18, {SYNC+32}, v18")
    A("s_lshl_b32 s44, s48, 2"); A(f"s_add_u32 s44, s44, {SYNC}"); A("v_mov_b32 v19, s44"); A(f"v_mov_b32 v20, {SYNC+48}")
    A("s_mul_i32 s95, s3, 1179648"); A("s_lshl_b32 s44, s71, 8"); A("s_add_u32 s95, s95, s44")
    for j in range(3): stage_index(A, j, 90+j)
    A("s_and_b32 s44, s2, 7"); A("s_lshl3_add_u32 s44, s44, s5")
    A("s_lshl_b32 s93, s44, 8"); A(f"s_add_u32 s93, s93, {FL1}")
    A("s_mul_i32 s54, s44, 196608")
    A("L_lq_next:")
    e = 1
    if cfg.vspread:
        e = 2
        A("s_cmp_gt_u32 s61, 8"); A("s_cbranch_scc1 L_k8")
        A("s_mov_b32 m0, s85"); A("s_add_u32 s85, s85, 1024")
        A(f"buffer_load_dwordx4 v14, {srd(SV)}, s84 offen {cfg.ld_kv} lds")
        A("s_add_u32 s84, s84, 1024"); A("v_xor_b32 v14, 128, v14")
    for n in range(3, 9):
        A(f"s_cmp_eq_u32 s61, {n}"); A(f"s_cbranch_scc0 L_k{n}")
        A(f"buffer_load_dwordx4 {v(40+4*(n-3),4)}, v25, {srd(SK)}, s56 offen offset:{(n-3)%4*1024} {cfg.ld_kv}")
        if n == 6: A("s_add_u32 s56, s56, 4096")
        A(f"s_waitcnt vmcnt({11+2*e})" if n > 3 else f"s_waitcnt vmcnt({11+e})")
        A("s_branch L_lq_b")
        A(f"L_k{n}:")
    A("s_waitcnt vmcnt(11)")
    A("L_lq_b:")
    bar(A)
    A("s_cmp_lt_u32 s61, 9"); A("s_cbranch_scc1 L_lq")
    A("v_mov_b32 v29, 0"); A(f"buffer_load_dwordx2 v[32:33], v29, {srd(SDBG)}, 0 offen sc1")
    for jj in range(6): A(f"ds_write_b128 v13, {v(40+4*jj,4)} offset:{jj*KP}")
    A("v_min_u32 v2, 31, v0"); A("v_and_b32 v3, 20, v2"); A("v_lshlrev_b32 v2, 2, v2"); A(f"v_add_u32 v2, {SYNC}, v2")
    A("v_cmp_eq_u32 vcc, 20, v3"); A("v_cndmask_b32 v30, 0, 1, vcc"); A("ds_write_b32 v2, v30")
    A("s_waitcnt vmcnt(0)"); bar(A)
    if not cfg.vspread:
        A("s_mov_b32 m0, s85")
        for jj in range(6):
            if jj == 4: A("s_add_u32 m0, m0, 4096"); A("s_add_u32 s84, s84, 4096")
            if jj == 0: A("v_xor_b32 v15, 128, v14")
            A(f"buffer_load_dwordx4 v{14 + (jj&1)}, {srd(SV)}, s84 offen offset:{(jj%4)*1024} {cfg.ld_kv} lds")
    if cfg.stg1: stage_loads(A, 1)
    A("v_readfirstlane_b32 s58, v32"); A("v_readfirstlane_b32 s59, v33"); A("s_cmp_lg_u32 s58, 0"); A("s_cbranch_scc1 L_nok")
    get_nonce_s(A, "l")
    A("L_nok:")
    A(f"s_mov_b32 s98, {nib(MPOS) & 0xffffffff}"); A(f"s_mov_b32 s99, {nib(MPOS) >> 32}")
    A(f"s_mov_b32 s100, {nib(MTHR) & 0xffffffff}"); A(f"s_mov_b32 s101, {nib(MTHR) >> 32}")
    A("s_lshl_b32 s44, s48, 2"); A("s_add_u32 s44, s44, 16"); A("s_lshr_b64 s[98:99], s[98:99], s44"); A("s_lshr_b64 s[100:101], s[100:101], s44")
    A(f"v_mov_b32 v22, {SYNC+52}"); A(f"v_mov_b32 v23, {SYNC+56}"); A("v_mov_b32 v24, 1")
    A("s_lshl2_add_u32 s44, s71, s48"); A("s_mul_i32 s44, s44, 73728"); A("s_add_u32 s45, s44, s95")
    A(f"s_mul_i32 s47, s48, {MSL}"); A("s_mul_i32 s46, s3, 1179648")
    A("s_waitcnt lgkmcnt(0)"); bar(A)
    def m_dma(first_hook=None):
        if not cfg.rotm:
            A("s_mov_b32 m0, s47")
            for i in range(16):
                if i: A("s_add_u32 m0, m0, 1056"); A(f"s_add_u32 s45, s45, {1152 if i != 8 else 25*1152}")
                else: A("s_nop 0")
                if first_hook and i == cfg.vpre: first_hook()
                A(f"buffer_load_dwordx4 v16, {srd(SWO)}, s45 offen {cfg.ld_wo} lds")
            return
        A("s_lshl_b32 s55, s5, 1")
        for i in range(16):
            A("s_mul_i32 s56, s55, 1056"); A("s_add_u32 m0, s56, s47")
            A("s_and_b32 s56, s55, 8"); A("s_mul_i32 s56, s56, 3"); A("s_add_u32 s56, s56, s55"); A("s_mul_i32 s56, s56, 1152"); A("s_add_u32 s56, s56, s45")
            if first_hook and i == cfg.vpre: first_hook()
            A(f"buffer_load_dwordx4 v16, {srd(SWO)}, s56 offen {cfg.ld_wo} lds")
            if i < 15: A("s_add_u32 s55, s55, 1"); A("s_and_b32 s55, s55, 15")
    def vsig():
        A(f"s_waitcnt vmcnt({cfg.vpre})"); A("ds_write_b32 v19, v24 offset:96"); stamp(A)
    m_dma(None if cfg.vspread else vsig)
    A("s_add_u32 s45, s44, s46"); A("s_add_u32 s45, s45, 1024")
    A(f"s_mul_i32 s46, s48, {USL}"); A(f"s_add_u32 s47, s46, {UB}")
    A("s_mov_b32 s55, s5" if cfg.rotm else "s_mov_b32 s55, 0")
    for i in range(8):
        A("s_mul_i32 s56, s55, 1056"); A("s_add_u32 m0, s56, s47"); A("s_mul_i32 s56, s55, 1152"); A("s_add_u32 s56, s56, s45")
        A(f"buffer_load_dwordx4 v17, {srd(SWO)}, s56 offen {cfg.ld_wo} lds")
        if i < 7: A("s_add_u32 s55, s55, 1"); A("s_and_b32 s55, s55, 7")
    A("s_add_u32 s60, s48, 4"); A("v_mov_b32 v31, s60"); A("s_waitcnt vmcnt(0)"); A("ds_write_b32 v19, v31")
    stamp(A)
    A("s_mov_b32 s61, 0")
    A("L_st:")
    A("s_and_b32 s60, s100, 15"); A("s_and_b32 s44, s98, 15"); A(f"s_mul_i32 s47, s44, {MSL}")
    A("s_lshr_b64 s[98:99], s[98:99], 16"); A("s_lshr_b64 s[100:101], s[100:101], 16")
    A("s_mul_i32 s45, s90, 73728"); A("s_add_u32 s45, s45, s95")
    lds_wait(A, "m", 18, "s60")
    if cfg.stg1:
        A("s_cmp_eq_u32 s61, 4"); A("s_cbranch_scc0 L_md")
        A("v_add_u32 v21, s47, v25")
        for i in range(16): A(f"ds_write_b128 v21, {v(STG+64+4*i,4)} offset:{i*1056}")
        A("s_branch L_md2")
        A("L_md:")
    m_dma()
    A("L_md2:")
    stamp(A)
    A("s_add_u32 s60, s48, s61")
    A("s_cmp_ge_u32 s60, 6"); A("s_cselect_b32 s44, 4, 0"); A("v_add_u32 v21, s44, v22"); A("s_lshl_b32 s44, s44, 5"); A("s_add_u32 s88, s93, s44"); A("s_add_u32 s87, s88, 64")
    if not cfg.nosync:
        if not cfg.allpoll:
            A("s_cmp_eq_u32 s60, 0"); A("s_cbranch_scc1 L_fp"); A("s_cmp_eq_u32 s60, 6"); A("s_cbranch_scc1 L_fp")
            lds_wait(A, "fl", 21, 1)
            A("s_branch L_fpx")
        A("L_fp:")
        A(f"s_mov_b32 s89, {cfg.spin}")
        A("L_fp1:")
        A("ds_read_b32 v30, v21"); A("s_waitcnt lgkmcnt(0)"); A("v_cmp_ne_u32 vcc, 0, v30"); A("s_cbranch_vccnz L_fpx")
        A("s_load_dwordx16 s[8:23], s[28:29], s88 glc"); A("s_load_dwordx16 s[32:47], s[28:29], s87 glc")
        regs = list(range(8, 24, 2)) + list(range(32, 48, 2))
        A("s_waitcnt lgkmcnt(0)")
        for r in regs: A(f"s_xor_b64 s[{r}:{r+1}], s[{r}:{r+1}], s[58:59]")
        for r in regs[1:]: A(f"s_or_b64 s[8:9], s[8:9], s[{r}:{r+1}]")
        A("s_cbranch_scc0 L_fp2")
        A("s_sub_u32 s89, s89, 1"); A("s_cbranch_scc0 L_fp1")
        A("L_fp2:")
        A("ds_write_b32 v21, v24")
        A("L_fpx:")
    lds_wait(A, "o", 18, "s60")
    stamp(A)
    A("s_mul_i32 s44, s60, 52"); A("s_lshr_b32 s44, s44, 8"); A("s_mul_i32 s44, s44, 5"); A("s_sub_u32 s44, s60, s44")
    A(f"s_mul_i32 s44, s44, {OSL}"); A(f"s_add_u32 m0, s44, {OR0}")
    A(f"s_mul_i32 s44, s90, 12288"); A("s_add_u32 s44, s44, s54")
    for ii in range(12):
        if ii % 4 == 0 and ii: A("s_add_u32 m0, m0, 4096"); A("s_add_u32 s44, s44, 4096")
        A(f"buffer_load_dwordx4 v25, {srd(SWS)}, s44 offen offset:{(ii%4)*1024} {cfg.ld_o} lds")
    A("s_add_u32 s60, s60, 8"); A("v_mov_b32 v31, s60"); A("s_mov_b32 s90, s91"); A("s_mov_b32 s91, s92")
    A("s_waitcnt vmcnt(0) lgkmcnt(0)"); A("ds_write_b32 v19, v31")
    stamp(A)
    A("s_add_u32 s61, s61, 4"); A("s_cmp_lt_u32 s61, 12"); A("s_cbranch_scc1 L_st")
    A("s_setprio 3")
    A("s_mov_b32 s86, 0x3f80"); A("s_mov_b32 s85, 0x3f800000")
    A("s_lshl3_add_u32 s47, s4, s5")
    A("s_cmp_eq_u32 s48, 0"); A("s_cbranch_scc1 L_fin_u")
    A("s_sub_u32 s48, s48, 1")
    A("s_lshl2_add_u32 s44, s47, s71"); A("s_lshl2_add_u32 s44, s44, s3")
    A("s_lshl_b32 s51, s44, 7"); A(f"s_add_u32 s51, s51, {FL2}")
    A("s_mul_i32 s50, s44, 24576"); A("s_lshl_b32 s45, s48, 11"); A("s_add_u32 s50, s50, s45"); A(f"s_add_u32 s50, s50, {PART}")
    for i in range(3):
        A(f"s_add_u32 s46, s3, {i+1}"); A("s_and_b32 s46, s46, 3"); A("s_mul_i32 s46, s46, 6144"); A(f"s_add_u32 s{52+i}, s50, s46")
    A(f"s_add_u32 s45, s45, {LOWN}"); A("v_add_u32 v29, s45, v25")
    A("v_and_b32 v27, 3, v0"); A("v_lshlrev_b32 v27, 3, v27")
    A("v_and_b32 v2, 15, v0"); A("v_mul_u32_u24 v2, 2304, v2"); A("v_lshrrev_b32 v3, 4, v0"); A("v_lshl_add_u32 v28, v3, 3, v2")
    A("s_and_b32 s44, s3, 1"); A("s_lshl1_add_u32 s44, s5, s44"); A("s_mul_i32 s60, s44, 110592")
    A("s_mul_i32 s44, s48, 36864"); A("s_add_u32 s60, s60, s44")
    A("s_mul_i32 s44, s4, 1152"); A("s_add_u32 s60, s60, s44"); A("s_lshl_b32 s44, s71, 8"); A("s_add_u32 s60, s60, s44")
    A("s_lshr_b32 s44, s3, 1"); A("s_lshl_b32 s44, s44, 7"); A("s_add_u32 s60, s60, s44")
    lds_wait(A, "f", 20, 1)
    stamp(A)
    A("ds_read_b128 v[32:35], v29"); A("ds_read_b128 v[36:39], v29 offset:1024")
    if cfg.spoll: spoll(A, "f", 51, 0, 4)
    else: poll(A, "f", 27, 51)
    stamp(A)
    for i in range(3):
        A(f"buffer_load_dwordx4 {v(40+8*i,4)}, v25, {srd(SWS)}, s{52+i} offen sc1")
        A(f"buffer_load_dwordx4 {v(44+8*i,4)}, v25, {srd(SWS)}, s{52+i} offen offset:1024 sc1")
    A("s_waitcnt lgkmcnt(0)")
    for j in range(8):
        A(f"v_lshlrev_b32 v{64+2*j}, 16, v{32+j}"); A(f"v_and_b32 v{65+2*j}, 0xffff0000, v{32+j}")
    for i in range(3):
        A(f"s_waitcnt vmcnt({4-2*i})")
        for j in range(8):
            A(f"v_dot2_f32_bf16 v{64+2*j}, v{40+8*i+j}, s86, v{64+2*j}")
            A(f"v_dot2_f32_bf16 v{65+2*j}, v{40+8*i+j}, s85, v{65+2*j}")
    A("s_nop 2")
    for j in range(8): A(f"v_cvt_pk_bf16_f32 v{32+j}, v{64+2*j}, v{65+2*j}")
    for j in range(4): A(f"buffer_store_dwordx2 {v(32+2*j,2)}, v28, {srd(SOUT)}, s60 offen offset:{32*j}")
    A("s_branch L_fin4")
    A("L_fin_u:")
    A("s_lshl_b32 s51, s47, 9"); A(f"s_add_u32 s51, s51, {FL3}")
    A("s_mul_i32 s50, s47, 196608"); A("s_mul_i32 s44, s6, 768"); A("s_add_u32 s50, s50, s44"); A(f"s_add_u32 s50, s50, {PART3}")
    A("v_lshlrev_b32 v27, 3, v0")
    A("s_mul_i32 s44, s6, 48"); A("v_add_u32 v2, s44, v0")
    A("v_lshrrev_b32 v3, 6, v2")
    A("v_mul_u32_u24 v4, 86, v3"); A("v_lshrrev_b32 v4, 8, v4")
    A("v_mul_u32_u24 v5, 3, v4"); A("v_sub_u32 v5, v3, v5")
    A("v_and_b32 v6, 1, v4"); A("v_mul_u32_u24 v6, 48, v6"); A("v_lshl_add_u32 v6, v5, 4, v6")
    A("v_and_b32 v5, 15, v2"); A("v_add_u32 v6, v6, v5"); A("v_mul_u32_u24 v6, 2304, v6")
    A("v_lshrrev_b32 v4, 1, v4"); A("v_lshl_add_u32 v6, v4, 6, v6")
    A("v_bfe_u32 v5, v2, 4, 2"); A("v_lshl_add_u32 v28, v5, 3, v6")
    A("s_mul_i32 s60, s5, 221184"); A("s_mul_i32 s44, s4, 1152"); A("s_add_u32 s60, s60, s44"); A("s_add_u32 s60, s60, 1024")
    poll(A, "u", 27, 51)
    stamp(A)
    A("s_mov_b32 exec_hi, 0xffff")
    for i in range(16):
        A(f"buffer_load_dwordx4 {v(40+4*i,4)}, v25, {srd(SWS)}, s50 offen sc1")
        if i < 15: A("s_add_u32 s50, s50, 12288")
    A("s_waitcnt vmcnt(15)")
    for j in range(4):
        A(f"v_lshlrev_b32 v{32+2*j}, 16, v{40+j}"); A(f"v_and_b32 v{33+2*j}, 0xffff0000, v{40+j}")
    for i in range(1, 16):
        A(f"s_waitcnt vmcnt({15-i})")
        for j in range(4):
            A(f"v_dot2_f32_bf16 v{32+2*j}, v{40+4*i+j}, s86, v{32+2*j}")
            A(f"v_dot2_f32_bf16 v{33+2*j}, v{40+4*i+j}, s85, v{33+2*j}")
    A("s_nop 2")
    for j in range(4): A(f"v_cvt_pk_bf16_f32 v{40+j}, v{32+2*j}, v{33+2*j}")
    A(f"buffer_store_dwordx2 v[40:41], v28, {srd(SOUT)}, s60 offen")
    A(f"buffer_store_dwordx2 v[42:43], v28, {srd(SOUT)}, s60 offen offset:32")
    A("s_mov_b64 exec, -1")
    A("L_fin4:")
    if cfg.prof: A("s_waitcnt vmcnt(0)"); stamp(A)
    dump_stamps(A)
    A("s_branch L_end")
    if cfg.no_dma: L = [x for x in L if not (x.startswith('buffer_load_dwordx4') and (x.endswith('lds') or 's[24:27]' in x or 's[12:15]' in x))]
    return fix(L)

VA, VB0, VB1, VK0, VK1, VV, VOW, VOG, VM, VU, VO, VL16 = 2, 3, 4, 5, 6, 7, 15, 16, 17, 18, 19, 21
VRA, VDA, VR, VD = 29, 30, 31, 20
VN = 156; VML = 158
SET = {1: (32, 64), 0: (76, 108)}
ACC = 160
def acc(qt, dt): return ACC + qt*32 + dt*4
KF = 76
def q_reads(ks, st):
    a, b = SET[st]; R = []
    for qt in range(3): R.append(f"ds_read_b128 {v(b+4*qt,4)}, v{VB0+ks} offset:{qt*2048}")
    for dt in range(8):
        for half in range(2):
            R.append(f"ds_read_b64_tr_b16 {v(a+4*dt+2*half,2)}, v{VA} offset:{ks*16896+half*8448+dt*32}")
    return R[3:5] + R[0:3] + R[5:]
def q_mfma(st):
    a, b = SET[st]
    if cfg.qorder == 0: od = [(dt, qt) for dt in range(8) for qt in range(3)]
    elif cfg.qorder == 1: od = [(dt, qt if dt % 2 == 0 else 2-qt) for dt in range(8) for qt in range(3)]
    elif cfg.qorder == 2: od = [(2*d2 + (i if qt % 2 == 0 else 1-i), qt) for d2 in range(4) for qt in range(3) for i in range(2)]
    return [f"v_mfma_f32_16x16x32_bf16 {v(acc(qt,dt),4)}, {v(a+4*dt,4)}, {v(b+4*qt,4)}, {v(acc(qt,dt),4)}" for dt, qt in od]
def weave(M, gaps):
    out = []
    for i, m in enumerate(M):
        out.append(m)
        if i < len(gaps): out.extend(gaps[i])
    for g in gaps[len(M):]: out.extend(g)
    return out
P2 = {0: 32, 1: 68}
AC2 = 104; PK = 184; PKU = 224
def a2(f, qt): return AC2 + (f*3+qt)*4 if f < 4 else [160,164,168,172,192,196][(f-4)*3+qt]
def w_reads(ks, st, own):
    a = P2[st]; R = []
    for f in range(6 if own else 4):
        for half in range(2):
            if f < 4: R.append(f"ds_read_b64_tr_b16 {v(a+4*f+2*half,2)}, v{VM} offset:{ks*8448+half*512+f*32}")
            else: R.append(f"ds_read_b64_tr_b16 {v(a+4*f+2*half,2)}, v{VU} offset:{(ks*4+half*2)*128+(f-4)*32}")
    B = [f"ds_read_b128 {v(a+24+4*qt,4)}, v{VO} offset:{qt*2048+ks*1024}" for qt in range(3)]
    return R[:2] + B + R[2:]
def w_mfma(st, own, first=False):
    a = P2[st]
    return [f"v_mfma_f32_16x16x32_bf16 {v(a2(f,qt),4)}, {v(a+4*f,4)}, {v(a+24+4*qt,4)}, {'0' if first else v(a2(f,qt),4)}"
            for f in range(6 if own else 4) for qt in range(3)]

def attention(lastq):
    L = []; bias = {}
    cur = [0]
    def A(x):
        bias[len(L)] = cur[0]; L.append(x)
    VQ, VP = 32, 124
    for x in lastq: A(x)
    for ks in range(4):
        for kt in range(3):
            for half in range(2):
                A(f"ds_read_b64 {v(KF+(kt*4+ks)*4+2*half,2)}, v{VK0+half} offset:{kt*4*KP+ks*64}")
    def qb(ks, qt): return ACC + qt*32 + ks*8
    def sp(i): return ACC + (i//4)*32 + (i%4)*8 + 4
    def S(kt, qt): return sp(qt*4 + kt)
    def PB(qt): return sp(qt*4 + 3)
    OODD = {0: 140, 1: KF, 2: KF+16}
    def O(dt, qt): return qb(dt//2, qt) if dt % 2 == 0 else OODD[qt] + (dt//2)*4
    m = [23, 24, 25]; t = [26, 27, 28]
    for qt in range(3):
        cur[0] = (2-qt)*cfg.bias
        for ks in range(4):
            r = qb(ks, qt)
            for j in range(4): A(f"v_cvt_pk_bf16_f32 v{r+j}, v{r+2*j}, v{r+2*j+1}")
        for ks in range(4):
            for kt in range(3):
                c = "0" if ks == 0 else v(S(kt,qt),4)
                A(f"v_mfma_f32_16x16x32_bf16 {v(S(kt,qt),4)}, {v(KF+(kt*4+ks)*4,4)}, {v(qb(ks,qt),4)}, {c}")
    vr = []; vregs = set()
    for dt in range(8):
        for x in (f"ds_read_b64_tr_b16 {v(VQ+4*dt,2)}, v{VV+dt}", f"ds_read_b64_tr_b16 {v(VQ+4*dt+2,2)}, v{VV+dt} offset:4096",
                  f"ds_read_b64_tr_b16 {v(VP+2*dt,2)}, v{VV+dt} offset:8192"):
            i = I(x); i.r = i.r | {('x','vl')}; vr.append(i); vregs |= i.w
    lr = I(f"ds_read_b32 v{VR}, v{VRA} offset:96"); lr.r = lr.r | {('v', S(0,0))}
    lc = I(f"v_cmp_eq_u32 vcc, 0, v{VR}")
    lb = I("s_cbranch_vccnz L_vls"); lb.text = "s_cbranch_vccnz L_vls\nL_vlg:"; lb.r = {('s','vcc')}; lb.w = {('x','vl')}
    kw = I(f"ds_write_b32 v{VDA}, v{VD} offset:48"); kw.r = kw.r | vregs | {('v', KF+i) for i in range(48)}; kw.w = {('x','kw')}
    kr = I(f"ds_read_b32 v{VR}, v{VRA} offset:64"); kr.r = kr.r | {('x','kw'), ('v', PB(0))}
    kc = I(f"v_cmp_eq_u32 vcc, 0, v{VR}")
    kb = I("s_cbranch_vccnz L_kvs"); kb.text = "s_cbranch_vccnz L_kvs\nL_kvg:"; kb.r = {('s','vcc')}; kb.w = {('x','bar2')}
    stores = {}
    D = []; defer = D.append
    for qt in range(3):
        cur[0] = (2-qt)*cfg.bias
        s = [S(kt,qt)+r for kt in range(3) for r in range(4)]
        M, T = m[qt], t[qt]
        A(f"v_max3_f32 v{M}, v{s[0]}, v{s[1]}, v{s[2]}"); A(f"v_max3_f32 v{T}, v{s[3]}, v{s[4]}, v{s[5]}")
        A(f"v_max3_f32 v{M}, v{M}, v{s[6]}, v{s[7]}"); A(f"v_max3_f32 v{T}, v{T}, v{s[8]}, v{s[9]}")
        A(f"v_max3_f32 v{M}, v{M}, v{s[10]}, v{s[11]}"); A(f"v_max_f32 v{M}, v{M}, v{T}")
        if qt == 0:
            if not cfg.vspread: A(lr); A(lc); A(lb)
            for x in vr: A(x)
            A(kw)
        for sw in ("v_permlane16_swap_b32", "v_permlane32_swap_b32"):
            A(f"v_mov_b32 v{T}, v{M}"); A(f"{sw} v{M}, v{T}"); A(f"v_max_f32 v{M}, v{M}, v{T}")
        A(f"v_mul_f32 v{M}, s51, v{M}")
        for x in s: A(f"v_fma_f32 v{x}, v{x}, s51, -v{M}")
        for x in s: A(f"v_exp_f32 v{x}, v{x}")
        A(f"v_add_f32 v{M}, v{s[0]}, v{s[1]}"); A(f"v_add_f32 v{T}, v{s[2]}, v{s[3]}")
        for i in range(4, 12, 2):
            A(f"v_add_f32 v{M}, v{M}, v{s[i]}"); A(f"v_add_f32 v{T}, v{T}, v{s[i+1]}")
        A(f"v_add_f32 v{M}, v{M}, v{T}")
        for sw in ("v_permlane16_swap_b32", "v_permlane32_swap_b32"):
            A(f"v_mov_b32 v{T}, v{M}"); A(f"{sw} v{M}, v{T}"); A(f"v_add_f32 v{M}, v{M}, v{T}")
        A(f"v_rcp_f32 v{M}, v{M}")
        for x in s: A(f"v_mul_f32 v{x}, v{x}, v{M}")
        for j in range(4): A(f"v_cvt_pk_bf16_f32 v{PB(qt)+j}, v{s[2*j]}, v{s[2*j+1]}")
        for j in range(2): A(f"v_cvt_pk_bf16_f32 v{S(2,qt)+j}, v{s[8+2*j]}, v{s[9+2*j]}")
        if qt == 0: A(kr); A(kc); A(kb)
        base = cur[0]
        def lo(dt):
            cur[0] = -3000 if (cfg.u0first and dt >= 4) else base
        for dt in range(8):
            lo(dt); i = I(f"v_mfma_f32_16x16x32_bf16 {v(O(dt,qt),4)}, {v(VQ+4*dt,4)}, {v(PB(qt),4)}, 0")
            (defer if (cfg.u0hard and dt >= 4) else A)(i)
        for dt in range(8):
            lo(dt); (defer if (cfg.u0hard and dt >= 4) else A)(f"v_mfma_f32_16x16x16_bf16 {v(O(dt,qt),4)}, {v(VP+2*dt,2)}, {v(S(2,qt),2)}, {v(O(dt,qt),4)}")
        for ks in range(4):
            lo(2*ks)
            r = qb(ks, qt); k = O(2*ks+1, qt)
            E = defer if (cfg.u0hard and ks >= 2) else A
            E(f"v_cvt_pk_bf16_f32 v{r}, v{r}, v{r+1}"); E(f"v_cvt_pk_bf16_f32 v{r+1}, v{r+2}, v{r+3}")
            E(f"v_cvt_pk_bf16_f32 v{r+2}, v{k}, v{k+1}"); E(f"v_cvt_pk_bf16_f32 v{r+3}, v{k+2}, v{k+3}")
            w = I(f"ds_write_b128 v{VOW}, {v(r,4)} offset:{(ks>>1)*12288+qt*2048+(ks&1)*1024}"); w.r = w.r | {('x','bar2')}
            E(w)
            stores[qt, ks] = f"buffer_store_dwordx4 {v(r,4)}, v{VOG}, {srd(SWS)}, s{54+(ks>>1)*2+(qt>>1)} offen offset:{(qt&1)*2048+(ks&1)*1024} sc1"
    cur[0] = 5000
    order = [(0,0),(0,1),(0,2),(0,3),(1,0),(1,1),(2,0),(2,1)]
    late = [(1,2),(1,3),(2,2),(2,3)]
    if cfg.u0first:
        order = [(0,0),(0,1),(1,0),(1,1),(2,0),(2,1)]; late = [(0,2),(0,3)] + late
    if not cfg.no_ostore:
        for k in order: A(stores[k])
    if D:
        first = True
        for x in D:
            x = x if isinstance(x, I) else I(x)
            if x.kind == 'mfma' and not x.srcC: x.r = x.r | {('v', PB(2)+3)}
            cur[0] = -3000; A(x)
    if cfg.sched: L = schedule(L, verbose=True, bias=bias)
    return L, ([] if cfg.no_ostore else [stores[k] for k in late])

def compute():
    L = []; A = L.append
    A("s_and_b32 s44, s7, 1"); A("s_lshr_b32 s45, s7, 1")
    A("v_and_b32 v23, 15, v0"); A("v_lshrrev_b32 v24, 4, v0"); A("v_bfe_u32 v25, v0, 2, 2")
    A("v_and_b32 v26, 3, v0"); A("v_and_b32 v27, 1, v24"); A("v_lshrrev_b32 v28, 1, v24"); A("v_lshlrev_b32 v26, 3, v26")
    A("v_lshl_add_u32 v29, v27, 2, v25")
    A("v_mul_u32_u24 v20, 1056, v29"); A("v_add_u32 v20, v20, v26")
    A("v_lshl_add_u32 v30, v28, 9, v20")
    A("s_lshl_b32 s46, s45, 8"); A(f"s_add_u32 s46, s46, {SLOT_C}"); A(f"v_add_u32 v{VA}, s46, v30")
    A("v_lshl_add_u32 v30, v28, 8, v20"); A("s_lshl_b32 s46, s45, 7"); A(f"v_add_u32 v{VM}, s46, v30"); A(f"v_mov_b32 v{VML}, v{VM}")
    A("v_lshl_add_u32 v30, v28, 7, v20"); A("s_lshl_b32 s46, s45, 6"); A(f"s_add_u32 s46, s46, {UB}"); A(f"v_add_u32 v{VU}, s46, v30")
    A("v_lshrrev_b32 v30, 1, v23"); A("v_xor_b32 v30, v30, v24"); A("v_lshlrev_b32 v30, 4, v30"); A("v_lshl_add_u32 v30, v23, 7, v30")
    A("s_mul_i32 s47, s44, 6144"); A(f"s_add_u32 s46, s47, {SLOT_C+QW}")
    A(f"v_add_u32 v{VB0}, s46, v30"); A("v_xor_b32 v30, 64, v30"); A(f"v_add_u32 v{VB1}, s46, v30")
    A("v_and_b32 v31, 3, v0")
    A(f"v_mul_u32_u24 v30, {KP}, v25"); A("v_lshl_add_u32 v30, v31, 8, v30"); A("v_lshl_add_u32 v30, v27, 3, v30")
    A(f"s_mul_i32 s46, s44, {KPB}"); A(f"s_add_u32 s46, s46, {KB}"); A("v_add_u32 v30, s46, v30")
    A("v_xor_b32 v31, v31, v28"); A(f"v_lshl_add_u32 v{VK0}, v31, 4, v30")
    A("v_xor_b32 v31, 2, v31"); A(f"v_lshl_add_u32 v{VK1}, v31, 4, v30")
    A("v_lshl_add_u32 v22, v24, 2, v25")
    A("v_lshl_add_u32 v30, v22, 8, v26")
    A(f"s_mul_i32 s46, s44, {VPB}"); A(f"s_add_u32 s46, s46, {VB}"); A("v_add_u32 v30, s46, v30")
    for dt in range(8):
        A(f"v_xor_b32 v31, {dt}, v29"); A(f"v_lshl_add_u32 v{VV+dt}, v31, 5, v30")
    A(f"v_lshlrev_b32 v{VL16}, 4, v0")
    A("s_mul_i32 s46, s45, 24576"); A("s_add_u32 s46, s46, s47")
    A(f"v_add_u32 v{VOG}, s46, v{VL16}"); A(f"v_add_u32 v{VOW}, {OB}, v{VOG}")
    A(f"s_add_u32 s46, s47, {OB}"); A(f"v_add_u32 v{VO}, s46, v{VL16}")
    for i in range(48): A(f"v_mov_b64 {v(ACC+2*i,2)}, 0")
    A("v_mov_b32 v22, 0")
    A(f"v_and_b32 v{VRA}, 7, v0"); A(f"v_lshlrev_b32 v{VRA}, 2, v{VRA}"); A(f"v_add_u32 v{VRA}, {SYNC}, v{VRA}")
    A("s_lshl_b32 s46, s7, 2"); A(f"s_add_u32 s46, s46, {SYNC+16}"); A(f"v_mov_b32 v{VDA}, s46"); A(f"v_mov_b32 v{VD}, 64")
    A("s_and_b32 s46, s2, 7"); A("s_lshl3_add_u32 s46, s46, s5")
    A("s_lshl_b32 s52, s46, 8"); A("s_lshl2_add_u32 s47, s71, s7"); A("s_lshl3_add_u32 s52, s47, s52"); A(f"s_add_u32 s52, s52, {FL1}")
    A("s_lshl2_add_u32 s46, s46, s71"); A("s_mul_i32 s54, s46, 49152")
    A("s_add_u32 s55, s54, 4096"); A("s_add_u32 s56, s54, 12288"); A("s_add_u32 s57, s54, 16384")
    A("s_lshl3_add_u32 s47, s4, s5")
    A("s_lshl2_add_u32 s46, s47, s71"); A("s_lshl2_add_u32 s46, s46, s7")
    A("s_lshl_b32 s53, s46, 7"); A("s_lshl3_add_u32 s53, s3, s53"); A(f"s_add_u32 s53, s53, {FL2}")
    A("s_lshl2_add_u32 s46, s46, s3"); A("s_mul_i32 s60, s46, 6144"); A(f"s_add_u32 s60, s60, {PART}")
    A("s_lshl4_add_u32 s46, s47, s6"); A("s_lshl2_add_u32 s46, s46, s7")
    A("s_lshl_b32 s86, s46, 3"); A(f"s_add_u32 s86, s86, {FL3}")
    A("s_mul_i32 s87, s46, 3072"); A(f"s_add_u32 s87, s87, {PART3}")
    A("s_mov_b32 s51, 0x3e0293ee")
    A(f"s_mov_b32 s48, {SLOT_C}"); A("s_mov_b32 s49, 9")
    A(f"s_mov_b32 s58, {nib(MPOS) & 0xffffffff}"); A(f"s_mov_b32 s59, {nib(MPOS) >> 32}"); A(f"s_mov_b32 s61, {-4*OSL & 0xffffffff}"); A(f"s_mov_b32 s50, {OSL}")
    A(f"s_mov_b32 s85, {(1<<cfg.FA)|(1<<cfg.FB)|(1<<cfg.F3)|(1<<cfg.LS)}")
    A("s_waitcnt lgkmcnt(0)")
    mk_srd(A, SWS, 42, WS); mk_srd(A, SDBG, 82, 256)
    A("s_add_u32 s83, s52, 128")
    A("s_add_u32 s46, s2, s7"); A("s_cmp_lg_u32 s46, 0"); A("s_cbranch_scc1 L_nn")
    A("s_memrealtime s[46:47]"); A("s_waitcnt lgkmcnt(0)"); A("s_or_b32 s46, s46, 1")
    A(f"v_mov_b32 v{VN}, s46"); A(f"v_mov_b32 v{VN+1}, s47")
    A("s_mov_b64 exec, 1")
    A(f"buffer_store_dwordx2 {v(VN,2)}, v22, {srd(SDBG)}, 0 offen sc1")
    A("s_mov_b64 exec, -1")
    A("L_nn:")
    if cfg.prio: A(f"s_setprio {cfg.prio}")
    bar(A)
    L.extend(rt(0))
    L.extend(q_reads(0, 0))
    A("s_branch L_q_h1")
    out = fix(L)
    r = q_reads(0, 0)
    g2 = [[f"v_add_u32 v{VA}, s47, v{VA}"], [r[0], f"v_add_u32 v{VB0}, s47, v{VB0}"], [r[1], f"v_add_u32 v{VB1}, s47, v{VB1}"]] + [[x] for x in r[2:]]
    H2 = ["L_q_top:"] + weave(q_mfma(1), g2)
    r = q_reads(1, 1)
    g1 = [[x] for x in r] + [[f"s_add_u32 s46, s48, {QS}", f"s_cmp_eq_u32 s46, {LDS_Q_END}"], ["s_cselect_b32 s46, 0, s46", "s_sub_u32 s47, s46, s48"],
                             ["s_mov_b32 s48, s46", "s_sub_u32 s49, s49, 1"], [] if cfg.prof else ["s_cmp_lg_u32 s49, 0"]]
    H1 = ["L_q_h1:"] + weave(q_mfma(0), g1)
    tail = ["s_waitcnt lgkmcnt(0)"] + L_(bar) + (["s_cmp_lg_u32 s49, 0"] if cfg.prof else []) + ["s_cbranch_scc1 L_q_top"]
    L = H2 + H1 + tail
    L += rt(1) + [f"buffer_load_dwordx2 {v(VN,2)}, v22, {srd(SDBG)}, 0 offen sc1"]
    att, late = attention(q_mfma(1))
    L += att + rt(2)
    L += L_(stamp, False)
    L += ["s_mov_b32 s48, 0", "s_mov_b32 s49, 0", "s_waitcnt lgkmcnt(0)", f"ds_write_b32 v{VDA}, v{VD}", f"v_add_u32 v{VDA}, 16, v{VDA}", f"v_mov_b32 v{VD}, 0",
          f"s_mov_b32 s89, {cfg.spin}", "L_p0:", f"ds_read_b32 v{VR}, v{VRA}", "s_waitcnt lgkmcnt(0)", f"v_cmp_ge_u32 vcc, s49, v{VR}",
          "s_sub_u32 s89, s89, 1", "s_cbranch_scc1 L_p0x", "s_cbranch_vccnz L_p0", "L_p0x:"]
    L += L_(stamp, False)
    L += w_reads(0, 0, True)
    salu = [["s_lshr_b64 s[58:59], s[58:59], 4"], ["s_and_b32 s46, s58, 15"], [f"s_mul_i32 s46, s46, {MSL}"], ["s_cmp_eq_u32 s48, 3"], ["s_cselect_b32 s47, s61, s50"],
            ["s_add_u32 s48, s48, 1"], ["s_cmp_eq_u32 s48, 5"], ["s_cselect_b32 s48, 0, s48"], ["s_add_u32 s49, s49, 1"]]
    def h1(own, first=False, extra=[], lim=None):
        r = w_reads(1, 1, own); M = w_mfma(0, own, first)
        n = len(M)
        k = max(5, len(r) - 6)
        r = r[:k] + [f"ds_read_b32 v{VR}, v{VRA}"] + r[k:]
        g = [([r[i]] if i < len(r) else []) + (salu[i] if i < len(salu) else []) for i in range(n)]
        for i, e in enumerate(extra): g[min(n-1, i // 2 + 2)].append(e)
        g[n-2].append(f"v_cmp_ge_u32 vcc, s49, v{VR}")
        if lim: g[n-1].append(f"s_cmp_lt_u32 s49, {lim}")
        return weave(M, g)
    def h2(own, nown, n):
        r = w_reads(0, 0, nown); M = w_mfma(1, own)
        ad = [f"v_add_u32 v{VM}, s46, v{VML}", f"v_add_u32 v{VO}, s47, v{VO}"] + ([f"v_add_u32 v{VU}, {USL}, v{VU}"] if nown else []) + [f"v_add_u32 v{VD}, 1, v{VD}"]
        g = [([r[i-1]] if 1 <= i <= len(r) else []) + ([ad[i]] if i < len(ad) else []) for i in range(len(M))]
        g[-1].append(f"ds_write_b32 v{VDA}, v{VD}")
        g[0] += [f"s_cbranch_vccnz L_spin{n}", f"L_go{n}:"]
        g[5] += ["s_bitcmp1_b32 s85, s49"]
        g[6] += [f"s_cbranch_scc1 L_flag{n}", f"L_gf{n}:"]
        return weave(M, g)
    def top(n): return L_(stamp, False) + (["s_lshl_b64 s[96:97], s[96:97], 4"] if cfg.prof else [])
    def sig(so):
        if cfg.ssig: return [f"v_readfirstlane_b32 s92, v{VN}", f"v_readfirstlane_b32 s93, v{VN+1}", "s_nop 3", f"s_atomic_swap_x2 s[92:93], s[28:29], s{so}"]
        return ["s_mov_b64 exec, 1", f"buffer_store_dwordx2 {v(VN,2)}, v22, {srd(SWS)}, s{so} offen sc1", "s_mov_b64 exec, -1"]
    def flagblk(n):
        F = [f"L_flag{n}:"]
        if n == 0 and cfg.LS != cfg.FA: F += [f"s_cmp_eq_u32 s49, {cfg.LS}", f"s_cbranch_scc1 L_ls{n}"]
        F += ["s_waitcnt vmcnt(0)"]
        if n == 2 and cfg.FB > 4:
            F += [f"s_cmp_eq_u32 s49, {cfg.FB}", "s_cselect_b32 s84, s83, s86"]
        elif n < 2:
            F += [f"s_cmp_eq_u32 s49, {cfg.FA}", "s_cselect_b32 s84, 0, 128", "s_add_u32 s84, s84, s52"]
            if not cfg.nosync:
                F += [f"s_mov_b32 s89, {cfg.spin}", f"L_fn{n}:", f"v_cmp_ne_u32 s[90:91], 0, v{VN}", "s_sub_u32 s89, s89, 1", f"s_cbranch_scc1 L_fg{n}", "s_nop 2", "s_cmp_lg_u32 s90, 0", f"s_cbranch_scc1 L_fg{n}",
                      f"buffer_load_dwordx2 {v(VN,2)}, v22, {srd(SDBG)}, 0 offen sc1", "s_waitcnt vmcnt(0)", f"s_branch L_fn{n}", f"L_fg{n}:"]
        else:
            F += ["s_mov_b32 s84, s86"]
        F += sig(84)
        if n == 0: F += [f"L_ls{n}:", f"s_cmp_eq_u32 s49, {cfg.LS}", f"s_cbranch_scc0 L_fl{n}"] + late + [f"L_fl{n}:"]
        F += L_(stamp, False) + [f"s_branch L_gf{n}"]
        F += [f"L_spin{n}:"] + (["s_ff1_i32_b64 s98, vcc", "s_add_u32 s98, s98, 1", "s_or_b32 s96, s96, s98"] if cfg.prof else []) + \
             [f"s_mov_b32 s89, {cfg.spin}", f"L_sp{n}:", f"ds_read_b32 v{VR}, v{VRA}", "s_waitcnt lgkmcnt(0)", f"v_cmp_ge_u32 vcc, s49, v{VR}",
              "s_sub_u32 s89, s89, 1", f"s_cbranch_scc1 L_go{n}", f"s_cbranch_vccnz L_sp{n}", f"s_branch L_go{n}"]
        return F
    assert cfg.FA <= cfg.LS < cfg.FB and cfg.LS < 4 < cfg.F3 and cfg.F3 != cfg.FB
    uepi = []
    for qt in range(3):
        a, b = a2(4, qt), a2(5, qt)
        uepi += [f"v_cvt_pk_bf16_f32 v{PKU+4*qt}, v{a}, v{a+1}", f"v_cvt_pk_bf16_f32 v{PKU+4*qt+1}, v{a+2}, v{a+3}",
                 f"v_cvt_pk_bf16_f32 v{PKU+4*qt+2}, v{b}, v{b+1}", f"v_cvt_pk_bf16_f32 v{PKU+4*qt+3}, v{b+2}, v{b+3}",
                 f"buffer_store_dwordx4 {v(PKU+4*qt,4)}, v{VL16}, {srd(SWS)}, s87 offen offset:{qt*1024} sc1"]
    L += h1(True, True)
    L += ["L_o_top:"] + top(0) + h2(True, True, 0) + h1(True, lim=4) + ["s_cbranch_scc1 L_o_top"]
    L += rt(3) + top(1) + h2(True, False, 1) + h1(False, extra=uepi)
    L += ["L_r_top:"] + top(2) + h2(False, False, 2) + h1(False, lim=16) + ["s_cbranch_scc1 L_r_top"]
    L += L_(stamp, False)
    a = P2[1]
    def fin(own):
        F = []
        for i in range(6):
            qt = i >> 1
            for f in (2*(i&1), 2*(i&1)+1):
                F.append(f"v_mfma_f32_16x16x32_bf16 {v(a2(f,qt),4)}, {v(a+4*f,4)}, {v(a+24+4*qt,4)}, {v(a2(f,qt),4)}")
        for i in range(6):
            x, y = a2(2*(i&1), i>>1), a2(2*(i&1)+1, i>>1)
            F += [f"v_cvt_pk_bf16_f32 v{PK+4*i}, v{x}, v{x+1}", f"v_cvt_pk_bf16_f32 v{PK+4*i+1}, v{x+2}, v{x+3}",
                  f"v_cvt_pk_bf16_f32 v{PK+4*i+2}, v{y}, v{y+1}", f"v_cvt_pk_bf16_f32 v{PK+4*i+3}, v{y+2}, v{y+3}"]
            if own: F.append(f"ds_write_b128 v{VL16}, {v(PK+4*i,4)} offset:{i*1024}")
            else: F.append(f"buffer_store_dwordx4 {v(PK+4*i,4)}, v{VL16}, {srd(SWS)}, s{60 + (i>>2)} offen offset:{(i&3)*1024} sc1")
        return schedule(F)
    L += rt(4) + ["s_waitcnt lgkmcnt(0)", "s_add_u32 s61, s60, 4096", "s_cmp_eq_u32 s7, s3", "s_cbranch_scc1 L_own"]
    L += fin(False) + L_(stamp) + ["s_waitcnt vmcnt(0)", "L_own2:"] + L_(stamp)
    L += sig(53)
    if cfg.prof:
        L += ["s_waitcnt lgkmcnt(0)"]
        for k in range(5): L += [f"v_writelane_b32 v{PV}, s{8+4*k}, {48+2*k}", f"v_writelane_b32 v{PV}, s{10+4*k}, {49+2*k}"]
    dump_stamps(L.append)
    L += ["s_endpgm"]
    out += fix(L)
    out += fix(["L_own:", f"v_add_u32 v{VL16}, {LOWN}, v{VL16}", f"v_mov_b32 v{VDA}, {SYNC+48}"] + fin(True) + ["s_waitcnt lgkmcnt(0)", f"ds_write_b32 v{VDA}, v{VD}"] + L_(stamp) + ["s_branch L_own2"])
    for n in range(3): out += fix(flagblk(n))
    out += fix(["L_kvs:", f"s_mov_b32 s89, {cfg.spin}", "L_kvs2:", f"ds_read_b32 v{VR}, v{VRA} offset:64", "s_waitcnt lgkmcnt(0)", f"v_cmp_eq_u32 vcc, 0, v{VR}",
                "s_sub_u32 s89, s89, 1", "s_cbranch_scc1 L_kvg", "s_cbranch_vccnz L_kvs2", "s_branch L_kvg"])
    if not cfg.vspread: out += fix(["L_vls:", f"s_mov_b32 s89, {cfg.spin}", "L_vls2:", f"ds_read_b32 v{VR}, v{VRA} offset:96", "s_waitcnt lgkmcnt(0)", f"v_cmp_eq_u32 vcc, 0, v{VR}",
                "s_sub_u32 s89, s89, 1", "s_cbranch_scc1 L_vlg", "s_cbranch_vccnz L_vls2", "s_branch L_vlg"])
    return out

def main_kernel():
    ins = fix(L_(prologue)) + compute() + loader() + [I("L_end:")]
    return text(ins)
def build(path):
    hdr = open("concat_heads__gqa_block_cached__gqa_block_cached__near_ridge.s.ref").read().split("; Override launch")[0]
    s = hdr + f"; @launch grid=(256,1,1) block=(512,1,1) lds=163840\n"
    s += '.amdgcn_target "amdgcn-amd-amdhsa--gfx950"\n'
    s += mkkernel(KN, main_kernel(), vgpr=256, sgpr=102, accum=256)
    open(path, "w").write(s)
if __name__ == "__main__":
    out = sys.argv[1]
    for a in sys.argv[2:]:
        k, val = a.split("=")
        cur = getattr(cfg, k)
        setattr(cfg, k, (val == "1") if isinstance(cur, bool) else type(cur)(val.replace("_"," ") if isinstance(cur,str) else val))
    build(out)
```

```python
import sys
from asmlib import *
from mb_common import kernel as mkkernel
KN = "concat_heads__gqa_block_cached__gqa_block_cached__near_ridge_kernel"
WS = 268435456
class Cfg:
    prof = False
    ld_x = ""; ld_w = ""; ld_kv = ""; ld_wo = ""; ld_o = "sc1"
    FA = 1; FB = 3; F3 = 7
    sched = True; bias = 1000
    spin = 2000000
    prio = 1; slp = 2
    ssig = True; spoll = True; vpre = 4; rotm = True; LS = 1; allpoll = True
    vspread = True; stg1 = False; stg0 = True; pdelay = True; psl = 0; u0first = True; u0hard = False; q3only = False; nomfmaq = False; qorder = 1; worder = 0
    no_dma = False; nosync = False; no_ostore = False
cfg = Cfg()
QW = 33792; QS = 46080; LDS_Q_END = 138240; SLOT_C = 92160
KB = 112128; KPB = 13056; KP = 1088
VB = 138240; VPB = 12288
OR0 = 102400; OSL = 12288; OB = OR0 + OSL
MSL = 16896; UB = 4*MSL; USL = 8448
LOWN = 0
MPOS = [0,1,2,3,0,4,1,2,5,3,0,4,1,2,5,3]
MTHR = [0,0,0,0,1,2,2,3,4,4,5,6,7,8,9,10]
def nib(t): return sum(x << (4*i) for i, x in enumerate(t))
SYNC = 101376
PART = 256*49152; PART3 = PART + 1024*6144; FL1 = PART3 + 256*12288; FL2 = FL1 + 64*1024; FL3 = FL2 + 256*128
SX, SK, SV, SWQ, SWO, SWS, SOUT, SDBG = 8, 12, 16, 20, 24, 28, 72, 76
def srd(r): return f"s[{r}:{r+3}]"
def v(a, n=1): return f"v{a}" if n == 1 else f"v[{a}:{a+n-1}]"
PV = 1; PV2 = 159
def flush(A, wait=True):
    if wait: A("s_waitcnt lgkmcnt(0)")
    A("s_sub_u32 s64, s64, s66"); A("s_lshl_b64 exec, 1, s70")
    A(f"v_mov_b32 v{PV}, s64"); A(f"v_mov_b32 v{PV2}, s68"); A("s_mov_b64 exec, -1"); A("s_add_u32 s70, s70, 1")
def stamp(A, wait=True):
    if cfg.prof:
        flush(A, wait); A("s_memtime s[64:65]"); A("s_memrealtime s[68:69]")
def rt(k):
    return []
def bar(A):
    if cfg.prof: flush(A)
    A("s_barrier")
    if cfg.prof: A("s_memtime s[64:65]"); A("s_memrealtime s[68:69]")
def L_(f, *a):
    L = []; f(L.append, *a); return L
def mk_srd(A, r, ptr, size):
    A(f"s_mov_b32 s{r}, s{ptr}"); A(f"s_mov_b32 s{r+1}, s{ptr+1}")
    A(f"s_mov_b32 s{r+2}, {size}"); A(f"s_mov_b32 s{r+3}, 0x20000")
def prologue(A):
    A("s_cmp_ge_u32 s2, 256"); A("s_cbranch_scc1 L_end")
    A("s_bfe_u32 s4, s2, 0x10002")
    A("s_mul_i32 s44, s4, 40"); A("s_add_u32 s46, s0, s44"); A("s_addc_u32 s47, s1, 0")
    A("s_load_dwordx8 s[32:39], s[46:47], 0")
    A("s_load_dwordx2 s[40:41], s[46:47], 32")
    A("s_load_dwordx4 s[80:83], s[0:1], 80")
    A("s_load_dwordx2 s[42:43], s[0:1], 96")
    if cfg.prof:
        A("s_memrealtime s[62:63]"); A("s_memtime s[66:67]"); A("s_memtime s[64:65]"); A("s_memrealtime s[68:69]"); A("s_mov_b32 s70, 2"); A("s_mov_b64 s[96:97], 0")
    A("v_lshrrev_b32 v1, 6, v0")
    A("s_bfe_u32 s5, s2, 0x30003")
    A("v_readfirstlane_b32 s7, v1")
    A("s_lshr_b32 s71, s2, 6")
    A("s_and_b32 s3, s2, 3")
    A("s_lshl2_add_u32 s6, s3, s71")
    A("v_and_b32 v0, 63, v0")
    A("s_cmp_ge_u32 s7, 4"); A("s_cbranch_scc1 L_loader")
def dump_stamps(A):
    if not cfg.prof: return
    stamp(A)
    A(f"v_writelane_b32 v{PV}, s62, 0"); A(f"v_writelane_b32 v{PV}, s96, 61"); A(f"v_writelane_b32 v{PV}, s97, 62")
    A("s_memrealtime s[62:63]"); A("s_waitcnt lgkmcnt(0)"); A(f"v_writelane_b32 v{PV}, s62, 63")
    A("s_getreg_b32 s61, hwreg(HW_REG_XCC_ID)")
    A("s_lshl_b32 s61, s61, 8"); A("s_add_u32 s61, s61, s70")
    A(f"v_writelane_b32 v{PV}, s61, 1")
    A("v_lshlrev_b32 v3, 2, v0")
    A("s_lshl_b32 s61, s2, 11"); A("s_lshl_b32 s60, s7, 8"); A("s_add_u32 s61, s61, s60")
    A(f"s_add_u32 s61, s61, {WS-524288}")
    A(f"buffer_store_dword v{PV}, v3, s[28:31], s61 offen")
    A("s_sub_u32 s61, s61, 524288")
    A(f"buffer_store_dword v{PV2}, v3, s[28:31], s61 offen")
def poll(A, tag, voff, soff, off=0):
    if cfg.nosync: return
    A(f"s_mov_b32 s89, {cfg.spin}")
    A(f"L_poll{tag}:")
    A(f"buffer_load_dwordx2 v[30:31], v{voff}, {srd(SWS)}, s{soff} offen offset:{off} sc1")
    A("s_waitcnt vmcnt(0)")
    A("v_cmp_eq_u64 vcc, s[58:59], v[30:31]")
    A("s_sub_u32 s89, s89, 1")
    A("s_cbranch_scc1 L_pollx" + tag)
    A("s_nop 2")
    A("s_cmp_eq_u64 vcc, exec")
    A(f"s_cbranch_scc0 L_poll{tag}")
    A(f"L_pollx{tag}:")
def get_nonce_s(A, tag):
    A(f"s_mov_b32 s89, {cfg.spin}")
    A("v_mov_b32 v29, 0")
    A(f"L_non{tag}:")
    A(f"buffer_load_dwordx2 v[30:31], v29, {srd(SDBG)}, 0 offen sc1")
    A("s_waitcnt vmcnt(0)")
    A("v_readfirstlane_b32 s58, v30"); A("v_readfirstlane_b32 s59, v31")
    A("s_sub_u32 s89, s89, 1")
    A(f"s_cbranch_scc1 L_nonx{tag}")
    A("s_cmp_eq_u32 s58, 0")
    A(f"s_cbranch_scc1 L_non{tag}")
    A(f"L_nonx{tag}:")
def lds_wait(A, tag, vaddr, sneed):
    A(f"s_mov_b32 s89, {cfg.spin}")
    A(f"L_lw{tag}:")
    A(f"ds_read_b32 v30, v{vaddr}")
    A("s_waitcnt lgkmcnt(0)")
    A(f"v_cmp_gt_u32 vcc, {sneed}, v30")
    A("s_sub_u32 s89, s89, 1")
    A(f"s_cbranch_scc1 L_lwx{tag}")
    A(f"s_cbranch_vccz L_lwx{tag}")
    A(f"s_sleep {cfg.slp}")
    A(f"s_branch L_lw{tag}")
    A(f"L_lwx{tag}:")
def spoll(A, tag, soff, off, n):
    if cfg.nosync: return
    A(f"s_mov_b32 s89, {cfg.spin}")
    A(f"s_add_u32 s88, s{soff}, {off}")
    if n == 16: A("s_add_u32 s87, s88, 64")
    A(f"L_sp{tag}:")
    if n == 16:
        A("s_load_dwordx16 s[8:23], s[28:29], s88 glc"); A("s_load_dwordx16 s[32:47], s[28:29], s87 glc")
        regs = list(range(8, 24, 2)) + list(range(32, 48, 2))
    else:
        A("s_load_dwordx8 s[8:15], s[28:29], s88 glc"); regs = list(range(8, 16, 2))
    A("s_waitcnt lgkmcnt(0)")
    for r in regs: A(f"s_xor_b64 s[{r}:{r+1}], s[{r}:{r+1}], s[58:59]")
    for r in regs[1:]: A(f"s_or_b64 s[8:9], s[8:9], s[{r}:{r+1}]")
    A(f"s_cbranch_scc0 L_spx{tag}")
    A("s_sub_u32 s89, s89, 1")
    A(f"s_cbranch_scc0 L_sp{tag}")
    A(f"L_spx{tag}:")
def get_nonce_ss(A, tag):
    A(f"s_mov_b32 s89, {cfg.spin}")
    A(f"L_non{tag}:")
    A("s_load_dwordx2 s[58:59], s[82:83], 0 glc"); A("s_waitcnt lgkmcnt(0)")
    A("s_cmp_lg_u32 s58, 0"); A(f"s_cbranch_scc1 L_nonx{tag}")
    A("s_sub_u32 s89, s89, 1"); A(f"s_cbranch_scc0 L_non{tag}")
    A(f"L_nonx{tag}:")
STG = 64
def stage_index(A, j, dst):
    A(f"s_add_u32 s44, s48, {4*j}"); A("s_mul_i32 s45, s44, 86"); A("s_lshr_b32 s45, s45, 8")
    A("s_mul_i32 s46, s45, 3"); A("s_sub_u32 s44, s44, s46"); A("s_add_u32 s44, s44, s71"); A("s_add_u32 s44, s44, 1"); A("s_and_b32 s44, s44, 3")
    A("s_lshl_b32 s45, s45, 3"); A("s_lshr_b32 s45, 0x03010200, s45"); A("s_and_b32 s45, s45, 3"); A(f"s_lshl2_add_u32 s{dst}, s44, s45")
def stage_loads(A, j):
    A(f"s_mul_i32 s44, s{90+j}, 73728"); A("s_add_u32 s44, s44, s95")
    for i in range(16):
        if i % 4 == 0 and i: A(f"s_add_u32 s44, s44, {4*1152 if i != 8 else 28*1152}")
        A(f"buffer_load_dwordx4 {v(STG+64*j+4*i,4)}, v16, {srd(SWO)}, s44 offen offset:{(i%4)*1152} {cfg.ld_wo}")

def loader():
    L = []; A = L.append
    A("L_loader:")
    A("s_and_b32 s48, s7, 3")
    A("v_lshrrev_b32 v1, 5, v0"); A("v_lshlrev_b32 v1, 17, v1")
    A("v_and_b32 v2, 31, v0"); A("v_lshl_add_u32 v10, v2, 4, v1")
    A("s_and_b32 s57, s48, 1"); A("s_lshr_b32 s49, s48, 1")
    A("s_lshl_b32 s50, s6, 9"); A("s_lshl_b32 s44, s57, 15"); A("s_add_u32 s50, s50, s44")
    A("s_lshl_b32 s44, s49, 18"); A("s_add_u32 s50, s50, s44")
    A("s_mul_i32 s52, s48, 8448")
    A("v_lshrrev_b32 v1, 3, v0"); A("v_mul_u32_u24 v1, 1152, v1")
    A("v_and_b32 v2, 7, v0"); A("v_lshrrev_b32 v3, 4, v0"); A("v_xor_b32 v2, v2, v3")
    A("s_lshl_b32 s44, s57, 2"); A("v_xor_b32 v2, s44, v2")
    A("v_lshl_add_u32 v11, v2, 4, v1")
    A("v_xor_b32 v2, 4, v2"); A("v_lshl_add_u32 v12, v2, 4, v1")
    A("s_mul_i32 s51, s5, 110592"); A("s_mul_i32 s44, s48, 27648"); A("s_add_u32 s51, s51, s44")
    A("s_mul_i32 s53, s48, 3072"); A(f"s_add_u32 s53, s53, {QW}")
    A(f"s_mov_b32 s55, {SLOT_C}")
    A("s_mov_b32 s61, 0"); A("s_mov_b32 s88, 0")
    A("s_mov_b32 s22, 4718592"); A("s_mov_b32 s23, 0x20000"); A("s_mov_b32 s10, 884736"); A("s_mov_b32 s11, 0x20000")
    A("s_waitcnt lgkmcnt(0)")
    A("s_mov_b32 s20, s38"); A("s_mov_b32 s21, s39"); A("s_mov_b32 s8, s32"); A("s_mov_b32 s9, s33")
    stamp(A)
    A("L_lq:")
    if cfg.q3only: A("s_cmp_ge_u32 s61, 3"); A("s_cbranch_scc1 L_skipq")
    A("s_mov_b32 s44, s50"); A("s_add_u32 m0, s55, s52")
    for jj in range(8):
        if jj:
            A(f"s_add_u32 m0, m0, 1056"); A(f"s_add_u32 s44, s44, {8192 if jj != 4 else 5*8192}")
        else: A("s_add_u32 s50, s50, 524288")
        A(f"buffer_load_dwordx4 v10, {srd(SWQ)}, s44 offen {cfg.ld_w} lds")
    A("s_add_u32 m0, s55, s53"); A("s_mov_b32 s45, s51")
    for jj in range(3):
        if jj:
            A("s_add_u32 m0, m0, 1024"); A(f"s_add_u32 s45, s45, {8*1152}")
        A(f"buffer_load_dwordx4 v{11 + (jj&1)}, {srd(SX)}, s45 offen {cfg.ld_x} lds")
    A("L_skipq:")
    A("s_add_u32 s51, s51, 128")
    A(f"s_add_u32 s55, s55, {QS}"); A(f"s_cmp_eq_u32 s55, {LDS_Q_END}"); A("s_cselect_b32 s55, 0, s55")
    A("s_add_u32 s61, s61, 1")
    A("s_cmp_eq_u32 s88, 2"); A("s_cbranch_scc1 L_lq_next")
    A("s_cmp_eq_u32 s88, 1"); A("s_cbranch_scc1 L_setup")
    A("s_cmp_lt_u32 s61, 2"); A("s_cbranch_scc1 L_lq")
    A("s_mov_b32 s88, 1")
    stamp(A)
    A("s_waitcnt vmcnt(11)"); bar(A)
    A("s_branch L_lq")
    A("L_setup:")
    A("s_mov_b32 s88, 2")
    mk_srd(A, SK, 34, 3145728); mk_srd(A, SV, 36, 3145728); mk_srd(A, SWO, 40, 4718592)
    mk_srd(A, SWS, 42, WS); mk_srd(A, SOUT, 80, 1769472); mk_srd(A, SDBG, 82, 256)
    A("v_lshrrev_b32 v1, 4, v0"); A("v_and_b32 v2, 15, v0"); A("v_xor_b32 v3, v2, v1")
    A("v_lshlrev_b32 v3, 4, v3"); A("v_lshl_add_u32 v13, v1, 8, v3")
    A(f"s_mul_i32 s44, s49, {KPB}"); A(f"s_mul_i32 s45, s57, {6*KP}"); A("s_add_u32 s44, s44, s45"); A(f"s_add_u32 s44, s44, {KB}")
    A("v_add_u32 v13, s44, v13")
    A("v_mul_u32_u24 v16, 9216, v1"); A("v_lshl_add_u32 v16, v2, 4, v16")
    A("v_lshlrev_b32 v26, 3, v2")
    A("v_bfe_u32 v2, v0, 1, 3"); A("v_xor_b32 v2, v2, v1"); A("v_lshlrev_b32 v2, 5, v2")
    A("v_and_b32 v3, 1, v0"); A("v_lshl_add_u32 v2, v3, 4, v2"); A("v_lshl_add_u32 v14, v1, 8, v2")
    A("v_lshrrev_b32 v1, 3, v0"); A("v_mul_u32_u24 v1, 9216, v1"); A("v_and_b32 v2, 7, v0"); A("v_lshl_add_u32 v17, v2, 4, v1")
    A("s_lshl1_add_u32 s56, s5, s49"); A("s_lshl4_add_u32 s56, s56, s6"); A("s_mul_i32 s56, s56, 12288")
    A("s_mul_i32 s44, s57, 6144"); A("s_add_u32 s56, s56, s44")
    A("s_mov_b32 s84, s56")
    A(f"s_mul_i32 s85, s49, {VPB}"); A("s_add_u32 s85, s85, s44"); A(f"s_add_u32 s85, s85, {VB}")
    A("v_lshlrev_b32 v25, 4, v0")
    A("v_and_b32 v18, 3, v0"); A("v_lshlrev_b32 v18, 2, v18"); A(f"v_add_u32 v18, {SYNC+32}, v18")
    A("s_lshl_b32 s44, s48, 2"); A(f"s_add_u32 s44, s44, {SYNC}"); A("v_mov_b32 v19, s44"); A(f"v_mov_b32 v20, {SYNC+48}")
    A("s_mul_i32 s95, s3, 1179648"); A("s_lshl_b32 s44, s71, 8"); A("s_add_u32 s95, s95, s44")
    for j in range(3): stage_index(A, j, 90+j)
    A("s_and_b32 s44, s2, 7"); A("s_lshl3_add_u32 s44, s44, s5")
    A("s_lshl_b32 s93, s44, 10"); A(f"s_add_u32 s93, s93, {FL1}")
    A("s_mul_i32 s54, s44, 196608")
    A("L_lq_next:")
    e = 1
    if cfg.vspread:
        e = 2
        A("s_cmp_gt_u32 s61, 8"); A("s_cbranch_scc1 L_k8")
        A("s_mov_b32 m0, s85"); A("s_add_u32 s85, s85, 1024")
        A(f"buffer_load_dwordx4 v14, {srd(SV)}, s84 offen {cfg.ld_kv} lds")
        A("s_add_u32 s84, s84, 1024"); A("v_xor_b32 v14, 128, v14")
    for n in range(3, 9):
        A(f"s_cmp_eq_u32 s61, {n}"); A(f"s_cbranch_scc0 L_k{n}")
        A(f"buffer_load_dwordx4 {v(40+4*(n-3),4)}, v25, {srd(SK)}, s56 offen offset:{(n-3)%4*1024} {cfg.ld_kv}")
        if n == 6: A("s_add_u32 s56, s56, 4096")
        A(f"s_waitcnt vmcnt({11+2*e})" if n > 3 else f"s_waitcnt vmcnt({11+e})")
        A("s_branch L_lq_b")
        A(f"L_k{n}:")
    A("s_waitcnt vmcnt(11)")
    A("L_lq_b:")
    bar(A)
    A("s_cmp_lt_u32 s61, 9"); A("s_cbranch_scc1 L_lq")
    A("v_mov_b32 v29, 0"); A(f"buffer_load_dwordx2 v[32:33], v29, {srd(SDBG)}, 0 offen sc1")
    for jj in range(6): A(f"ds_write_b128 v13, {v(40+4*jj,4)} offset:{jj*KP}")
    A("v_min_u32 v2, 31, v0"); A("v_and_b32 v3, 20, v2"); A("v_lshlrev_b32 v2, 2, v2"); A(f"v_add_u32 v2, {SYNC}, v2")
    A("v_cmp_eq_u32 vcc, 20, v3"); A("v_cndmask_b32 v30, 0, 1, vcc"); A("ds_write_b32 v2, v30")
    A("s_waitcnt vmcnt(0)"); bar(A)
    if not cfg.vspread:
        A("s_mov_b32 m0, s85")
        for jj in range(6):
            if jj == 4: A("s_add_u32 m0, m0, 4096"); A("s_add_u32 s84, s84, 4096")
            if jj == 0: A("v_xor_b32 v15, 128, v14")
            A(f"buffer_load_dwordx4 v{14 + (jj&1)}, {srd(SV)}, s84 offen offset:{(jj%4)*1024} {cfg.ld_kv} lds")
    if cfg.stg1: stage_loads(A, 1)
    if cfg.stg0: stage_loads(A, 0)
    A("v_readfirstlane_b32 s58, v32"); A("v_readfirstlane_b32 s59, v33"); A("s_cmp_lg_u32 s58, 0"); A("s_cbranch_scc1 L_nok")
    get_nonce_s(A, "l")
    A("L_nok:")
    A(f"s_mov_b32 s98, {nib(MPOS) & 0xffffffff}"); A(f"s_mov_b32 s99, {nib(MPOS) >> 32}")
    A(f"s_mov_b32 s100, {nib(MTHR) & 0xffffffff}"); A(f"s_mov_b32 s101, {nib(MTHR) >> 32}")
    A("s_lshl_b32 s44, s48, 2"); A("s_add_u32 s44, s44, 16"); A("s_lshr_b64 s[98:99], s[98:99], s44"); A("s_lshr_b64 s[100:101], s[100:101], s44")
    A(f"v_mov_b32 v22, {SYNC+52}"); A(f"v_mov_b32 v23, {SYNC+56}"); A("v_mov_b32 v24, 1")
    A("s_lshl2_add_u32 s44, s71, s48"); A("s_mul_i32 s44, s44, 73728"); A("s_add_u32 s45, s44, s95")
    A(f"s_mul_i32 s47, s48, {MSL}"); A("s_mul_i32 s46, s3, 1179648")
    A("s_waitcnt lgkmcnt(0)"); bar(A)
    def m_dma(first_hook=None):
        if not cfg.rotm:
            A("s_mov_b32 m0, s47")
            for i in range(16):
                if i: A("s_add_u32 m0, m0, 1056"); A(f"s_add_u32 s45, s45, {1152 if i != 8 else 25*1152}")
                else: A("s_nop 0")
                if first_hook and i == cfg.vpre: first_hook()
                A(f"buffer_load_dwordx4 v16, {srd(SWO)}, s45 offen {cfg.ld_wo} lds")
            return
        A("s_lshl_b32 s55, s5, 1")
        for i in range(16):
            A("s_mul_i32 s56, s55, 1056"); A("s_add_u32 m0, s56, s47")
            A("s_and_b32 s56, s55, 8"); A("s_mul_i32 s56, s56, 3"); A("s_add_u32 s56, s56, s55"); A("s_mul_i32 s56, s56, 1152"); A("s_add_u32 s56, s56, s45")
            if first_hook and i == cfg.vpre: first_hook()
            A(f"buffer_load_dwordx4 v16, {srd(SWO)}, s56 offen {cfg.ld_wo} lds")
            if i < 15: A("s_add_u32 s55, s55, 1"); A("s_and_b32 s55, s55, 15")
    def vsig():
        A(f"s_waitcnt vmcnt({cfg.vpre})"); A("ds_write_b32 v19, v24 offset:96"); stamp(A)
    m_dma(None if cfg.vspread else vsig)
    A("s_add_u32 s45, s44, s46"); A("s_add_u32 s45, s45, 1024")
    A(f"s_mul_i32 s46, s48, {USL}"); A(f"s_add_u32 s47, s46, {UB}")
    A("s_mov_b32 s55, s5" if cfg.rotm else "s_mov_b32 s55, 0")
    for i in range(8):
        A("s_mul_i32 s56, s55, 1056"); A("s_add_u32 m0, s56, s47"); A("s_mul_i32 s56, s55, 1152"); A("s_add_u32 s56, s56, s45")
        A(f"buffer_load_dwordx4 v17, {srd(SWO)}, s56 offen {cfg.ld_wo} lds")
        if i < 7: A("s_add_u32 s55, s55, 1"); A("s_and_b32 s55, s55, 7")
    A("s_add_u32 s60, s48, 4"); A("v_mov_b32 v31, s60"); A("s_waitcnt vmcnt(0)"); A("ds_write_b32 v19, v31")
    stamp(A)
    A("v_add_u32 v21, -16, v18")
    A("s_mov_b32 s61, 0")
    A("L_st:")
    if not cfg.nosync:
        A("s_lshr_b32 s44, s90, 2"); A("s_lshl_b32 s44, s44, 8"); A("s_and_b32 s45, s90, 1"); A("s_lshl_b32 s45, s45, 7"); A("s_add_u32 s44, s44, s45")
        A("s_and_b32 s45, s90, 2"); A("s_lshl_b32 s45, s45, 3"); A("s_add_u32 s44, s44, s45"); A("s_add_u32 s88, s44, s93")
        if cfg.pdelay:
            A("s_cmp_eq_u32 s61, 0"); A("s_cbranch_scc0 L_fp0")
            lds_wait(A, "pd", 21, 1)
            A("L_fp0:")
        A(f"s_mov_b32 s89, {cfg.spin}")
        A("L_fp1:")
        A("s_load_dwordx4 s[8:11], s[28:29], s88 glc")
        A("s_waitcnt lgkmcnt(0)")
        A("s_xor_b64 s[8:9], s[8:9], s[58:59]"); A("s_xor_b64 s[10:11], s[10:11], s[58:59]"); A("s_or_b64 s[8:9], s[8:9], s[10:11]")
        A("s_cbranch_scc0 L_fpx")
        if cfg.psl: A(f"s_sleep {cfg.psl}")
        A("s_sub_u32 s89, s89, 1"); A("s_cbranch_scc0 L_fp1")
        A("L_fpx:")
    stamp(A)
    A("s_and_b32 s60, s100, 15"); A("s_and_b32 s44, s98, 15"); A(f"s_mul_i32 s47, s44, {MSL}")
    A("s_lshr_b64 s[98:99], s[98:99], 16"); A("s_lshr_b64 s[100:101], s[100:101], 16")
    A("s_mul_i32 s45, s90, 73728"); A("s_add_u32 s45, s45, s95")
    A("s_mov_b32 s84, s60"); A("v_add_u32 v33, s47, v25")
    if cfg.stg0: A("s_cmp_eq_u32 s61, 0"); A("s_cbranch_scc1 L_md2")
    lds_wait(A, "m", 18, "s60")
    if cfg.stg1:
        A("s_cmp_eq_u32 s61, 4"); A("s_cbranch_scc0 L_md")
        A("v_add_u32 v21, s47, v25")
        for i in range(16): A(f"ds_write_b128 v21, {v(STG+64+4*i,4)} offset:{i*1056}")
        A("s_branch L_md2")
        A("L_md:")
    m_dma()
    A("L_md2:")
    stamp(A)
    A("s_add_u32 s60, s48, s61")
    lds_wait(A, "o", 18, "s60")
    A("s_mul_i32 s44, s60, 52"); A("s_lshr_b32 s44, s44, 8"); A("s_mul_i32 s44, s44, 5"); A("s_sub_u32 s44, s60, s44")
    A(f"s_mul_i32 s44, s44, {OSL}"); A(f"s_add_u32 m0, s44, {OR0}")
    A(f"s_mul_i32 s44, s90, 12288"); A("s_add_u32 s44, s44, s54")
    for ii in range(12):
        if ii % 4 == 0 and ii: A("s_add_u32 m0, m0, 4096"); A("s_add_u32 s44, s44, 4096")
        A(f"buffer_load_dwordx4 v25, {srd(SWS)}, s44 offen offset:{(ii%4)*1024} {cfg.ld_o} lds")
    if cfg.stg0:
        A("s_cmp_eq_u32 s61, 0"); A("s_cbranch_scc0 L_md3")
        lds_wait(A, "m0", 18, "s84")
        for i in range(16): A(f"ds_write_b128 v33, {v(STG+4*i,4)} offset:{i*1056}")
        A("L_md3:")
    A("s_add_u32 s60, s60, 8"); A("v_mov_b32 v31, s60"); A("s_mov_b32 s90, s91"); A("s_mov_b32 s91, s92")
    A("s_waitcnt vmcnt(0) lgkmcnt(0)"); A("ds_write_b32 v19, v31")
    stamp(A)
    A("s_add_u32 s61, s61, 4"); A("s_cmp_lt_u32 s61, 12"); A("s_cbranch_scc1 L_st")
    A("s_setprio 3")
    A("s_mov_b32 s86, 0x3f80"); A("s_mov_b32 s85, 0x3f800000")
    A("s_lshl3_add_u32 s47, s4, s5")
    A("s_cmp_eq_u32 s48, 0"); A("s_cbranch_scc1 L_fin_u")
    A("s_sub_u32 s48, s48, 1")
    A("s_lshl2_add_u32 s44, s47, s71"); A("s_lshl2_add_u32 s44, s44, s3")
    A("s_lshl_b32 s51, s44, 7"); A(f"s_add_u32 s51, s51, {FL2}")
    A("s_mul_i32 s50, s44, 24576"); A("s_lshl_b32 s45, s48, 11"); A("s_add_u32 s50, s50, s45"); A(f"s_add_u32 s50, s50, {PART}")
    for i in range(3):
        A(f"s_add_u32 s46, s3, {i+1}"); A("s_and_b32 s46, s46, 3"); A("s_mul_i32 s46, s46, 6144"); A(f"s_add_u32 s{52+i}, s50, s46")
    A(f"s_add_u32 s45, s45, {LOWN}"); A("v_add_u32 v29, s45, v25")
    A("v_and_b32 v27, 3, v0"); A("v_lshlrev_b32 v27, 3, v27")
    A("v_and_b32 v2, 15, v0"); A("v_mul_u32_u24 v2, 2304, v2"); A("v_lshrrev_b32 v3, 4, v0"); A("v_lshl_add_u32 v28, v3, 3, v2")
    A("s_and_b32 s44, s3, 1"); A("s_lshl1_add_u32 s44, s5, s44"); A("s_mul_i32 s60, s44, 110592")
    A("s_mul_i32 s44, s48, 36864"); A("s_add_u32 s60, s60, s44")
    A("s_mul_i32 s44, s4, 1152"); A("s_add_u32 s60, s60, s44"); A("s_lshl_b32 s44, s71, 8"); A("s_add_u32 s60, s60, s44")
    A("s_lshr_b32 s44, s3, 1"); A("s_lshl_b32 s44, s44, 7"); A("s_add_u32 s60, s60, s44")
    lds_wait(A, "f", 20, 1)
    stamp(A)
    A("ds_read_b128 v[32:35], v29"); A("ds_read_b128 v[36:39], v29 offset:1024")
    if cfg.spoll: spoll(A, "f", 51, 0, 4)
    else: poll(A, "f", 27, 51)
    stamp(A)
    for i in range(3):
        A(f"buffer_load_dwordx4 {v(40+8*i,4)}, v25, {srd(SWS)}, s{52+i} offen sc1")
        A(f"buffer_load_dwordx4 {v(44+8*i,4)}, v25, {srd(SWS)}, s{52+i} offen offset:1024 sc1")
    A("s_waitcnt lgkmcnt(0)")
    for j in range(8):
        A(f"v_lshlrev_b32 v{64+2*j}, 16, v{32+j}"); A(f"v_and_b32 v{65+2*j}, 0xffff0000, v{32+j}")
    for i in range(3):
        A(f"s_waitcnt vmcnt({4-2*i})")
        for j in range(8):
            A(f"v_dot2_f32_bf16 v{64+2*j}, v{40+8*i+j}, s86, v{64+2*j}")
            A(f"v_dot2_f32_bf16 v{65+2*j}, v{40+8*i+j}, s85, v{65+2*j}")
    A("s_nop 2")
    for j in range(8): A(f"v_cvt_pk_bf16_f32 v{32+j}, v{64+2*j}, v{65+2*j}")
    for j in range(4): A(f"buffer_store_dwordx2 {v(32+2*j,2)}, v28, {srd(SOUT)}, s60 offen offset:{32*j}")
    A("s_branch L_fin4")
    A("L_fin_u:")
    A("s_lshl_b32 s51, s47, 9"); A(f"s_add_u32 s51, s51, {FL3}")
    A("s_mul_i32 s50, s47, 196608"); A("s_mul_i32 s44, s6, 768"); A("s_add_u32 s50, s50, s44"); A(f"s_add_u32 s50, s50, {PART3}")
    A("v_lshlrev_b32 v27, 3, v0")
    A("s_mul_i32 s44, s6, 48"); A("v_add_u32 v2, s44, v0")
    A("v_lshrrev_b32 v3, 6, v2")
    A("v_mul_u32_u24 v4, 86, v3"); A("v_lshrrev_b32 v4, 8, v4")
    A("v_mul_u32_u24 v5, 3, v4"); A("v_sub_u32 v5, v3, v5")
    A("v_and_b32 v6, 1, v4"); A("v_mul_u32_u24 v6, 48, v6"); A("v_lshl_add_u32 v6, v5, 4, v6")
    A("v_and_b32 v5, 15, v2"); A("v_add_u32 v6, v6, v5"); A("v_mul_u32_u24 v6, 2304, v6")
    A("v_lshrrev_b32 v4, 1, v4"); A("v_lshl_add_u32 v6, v4, 6, v6")
    A("v_bfe_u32 v5, v2, 4, 2"); A("v_lshl_add_u32 v28, v5, 3, v6")
    A("s_mul_i32 s60, s5, 221184"); A("s_mul_i32 s44, s4, 1152"); A("s_add_u32 s60, s60, s44"); A("s_add_u32 s60, s60, 1024")
    poll(A, "u", 27, 51)
    stamp(A)
    A("s_mov_b32 exec_hi, 0xffff")
    for i in range(16):
        A(f"buffer_load_dwordx4 {v(40+4*i,4)}, v25, {srd(SWS)}, s50 offen sc1")
        if i < 15: A("s_add_u32 s50, s50, 12288")
    A("s_waitcnt vmcnt(15)")
    for j in range(4):
        A(f"v_lshlrev_b32 v{32+2*j}, 16, v{40+j}"); A(f"v_and_b32 v{33+2*j}, 0xffff0000, v{40+j}")
    for i in range(1, 16):
        A(f"s_waitcnt vmcnt({15-i})")
        for j in range(4):
            A(f"v_dot2_f32_bf16 v{32+2*j}, v{40+4*i+j}, s86, v{32+2*j}")
            A(f"v_dot2_f32_bf16 v{33+2*j}, v{40+4*i+j}, s85, v{33+2*j}")
    A("s_nop 2")
    for j in range(4): A(f"v_cvt_pk_bf16_f32 v{40+j}, v{32+2*j}, v{33+2*j}")
    A(f"buffer_store_dwordx2 v[40:41], v28, {srd(SOUT)}, s60 offen")
    A(f"buffer_store_dwordx2 v[42:43], v28, {srd(SOUT)}, s60 offen offset:32")
    A("s_mov_b64 exec, -1")
    A("L_fin4:")
    if cfg.prof: A("s_waitcnt vmcnt(0)"); stamp(A)
    dump_stamps(A)
    A("s_branch L_end")
    if cfg.no_dma: L = [x for x in L if not (x.startswith('buffer_load_dwordx4') and (x.endswith('lds') or 's[24:27]' in x or 's[12:15]' in x))]
    return fix(L)

VA, VB0, VB1, VK0, VK1, VV, VOW, VOG, VM, VU, VO, VL16 = 2, 3, 4, 5, 6, 7, 15, 16, 17, 18, 19, 21
VRA, VDA, VR, VD = 29, 30, 31, 20
VN = 156; VML = 158
SET = {1: (32, 64), 0: (76, 108)}
ACC = 160
def acc(qt, dt): return ACC + qt*32 + dt*4
KF = 76
def q_reads(ks, st):
    a, b = SET[st]; R = []
    for qt in range(3): R.append(f"ds_read_b128 {v(b+4*qt,4)}, v{VB0+ks} offset:{qt*2048}")
    for dt in range(8):
        for half in range(2):
            R.append(f"ds_read_b64_tr_b16 {v(a+4*dt+2*half,2)}, v{VA} offset:{ks*16896+half*8448+dt*32}")
    return R[3:5] + R[0:3] + R[5:]
def q_mfma(st):
    a, b = SET[st]
    if cfg.qorder == 0: od = [(dt, qt) for dt in range(8) for qt in range(3)]
    elif cfg.qorder == 1: od = [(dt, qt if dt % 2 == 0 else 2-qt) for dt in range(8) for qt in range(3)]
    elif cfg.qorder == 2: od = [(2*d2 + (i if qt % 2 == 0 else 1-i), qt) for d2 in range(4) for qt in range(3) for i in range(2)]
    return [f"v_mfma_f32_16x16x32_bf16 {v(acc(qt,dt),4)}, {v(a+4*dt,4)}, {v(b+4*qt,4)}, {v(acc(qt,dt),4)}" for dt, qt in od]
def weave(M, gaps):
    out = []
    for i, m in enumerate(M):
        out.append(m)
        if i < len(gaps): out.extend(gaps[i])
    for g in gaps[len(M):]: out.extend(g)
    return out
P2 = {0: 32, 1: 68}
AC2 = 104; PK = 184; PKU = 224
def a2(f, qt): return AC2 + (f*3+qt)*4 if f < 4 else [160,164,168,172,192,196][(f-4)*3+qt]
def w_reads(ks, st, own):
    a = P2[st]; R = []
    for f in range(6 if own else 4):
        for half in range(2):
            if f < 4: R.append(f"ds_read_b64_tr_b16 {v(a+4*f+2*half,2)}, v{VM} offset:{ks*8448+half*512+f*32}")
            else: R.append(f"ds_read_b64_tr_b16 {v(a+4*f+2*half,2)}, v{VU} offset:{(ks*4+half*2)*128+(f-4)*32}")
    B = [f"ds_read_b128 {v(a+24+4*qt,4)}, v{VO} offset:{qt*2048+ks*1024}" for qt in range(3)]
    return R[:2] + B + R[2:]
def w_mfma(st, own, first=False):
    a = P2[st]
    return [f"v_mfma_f32_16x16x32_bf16 {v(a2(f,qt),4)}, {v(a+4*f,4)}, {v(a+24+4*qt,4)}, {'0' if first else v(a2(f,qt),4)}"
            for f in range(6 if own else 4) for qt in range(3)]

def attention(lastq):
    L = []; bias = {}
    cur = [0]
    def A(x):
        bias[len(L)] = cur[0]; L.append(x)
    VQ, VP = 32, 124
    for x in lastq: A(x)
    for ks in range(4):
        for kt in range(3):
            for half in range(2):
                A(f"ds_read_b64 {v(KF+(kt*4+ks)*4+2*half,2)}, v{VK0+half} offset:{kt*4*KP+ks*64}")
    def qb(ks, qt): return ACC + qt*32 + ks*8
    def sp(i): return ACC + (i//4)*32 + (i%4)*8 + 4
    def S(kt, qt): return sp(qt*4 + kt)
    def PB(qt): return sp(qt*4 + 3)
    OODD = {0: 140, 1: KF, 2: KF+16}
    def O(dt, qt): return qb(dt//2, qt) if dt % 2 == 0 else OODD[qt] + (dt//2)*4
    m = [23, 24, 25]; t = [26, 27, 28]
    for qt in range(3):
        cur[0] = (2-qt)*cfg.bias
        for ks in range(4):
            r = qb(ks, qt)
            for j in range(4): A(f"v_cvt_pk_bf16_f32 v{r+j}, v{r+2*j}, v{r+2*j+1}")
        for ks in range(4):
            for kt in range(3):
                c = "0" if ks == 0 else v(S(kt,qt),4)
                A(f"v_mfma_f32_16x16x32_bf16 {v(S(kt,qt),4)}, {v(KF+(kt*4+ks)*4,4)}, {v(qb(ks,qt),4)}, {c}")
    vr = []; vregs = set()
    for dt in range(8):
        for x in (f"ds_read_b64_tr_b16 {v(VQ+4*dt,2)}, v{VV+dt}", f"ds_read_b64_tr_b16 {v(VQ+4*dt+2,2)}, v{VV+dt} offset:4096",
                  f"ds_read_b64_tr_b16 {v(VP+2*dt,2)}, v{VV+dt} offset:8192"):
            i = I(x); i.r = i.r | {('x','vl')}; vr.append(i); vregs |= i.w
    lr = I(f"ds_read_b32 v{VR}, v{VRA} offset:96"); lr.r = lr.r | {('v', S(0,0))}
    lc = I(f"v_cmp_eq_u32 vcc, 0, v{VR}")
    lb = I("s_cbranch_vccnz L_vls"); lb.text = "s_cbranch_vccnz L_vls\nL_vlg:"; lb.r = {('s','vcc')}; lb.w = {('x','vl')}
    kw = I(f"ds_write_b32 v{VDA}, v{VD} offset:48"); kw.r = kw.r | vregs | {('v', KF+i) for i in range(48)}; kw.w = {('x','kw')}
    kr = I(f"ds_read_b32 v{VR}, v{VRA} offset:64"); kr.r = kr.r | {('x','kw'), ('v', PB(0))}
    kc = I(f"v_cmp_eq_u32 vcc, 0, v{VR}")
    kb = I("s_cbranch_vccnz L_kvs"); kb.text = "s_cbranch_vccnz L_kvs\nL_kvg:"; kb.r = {('s','vcc')}; kb.w = {('x','bar2')}
    stores = {}
    D = []; defer = D.append
    for qt in range(3):
        cur[0] = (2-qt)*cfg.bias
        s = [S(kt,qt)+r for kt in range(3) for r in range(4)]
        M, T = m[qt], t[qt]
        A(f"v_max3_f32 v{M}, v{s[0]}, v{s[1]}, v{s[2]}"); A(f"v_max3_f32 v{T}, v{s[3]}, v{s[4]}, v{s[5]}")
        A(f"v_max3_f32 v{M}, v{M}, v{s[6]}, v{s[7]}"); A(f"v_max3_f32 v{T}, v{T}, v{s[8]}, v{s[9]}")
        A(f"v_max3_f32 v{M}, v{M}, v{s[10]}, v{s[11]}"); A(f"v_max_f32 v{M}, v{M}, v{T}")
        if qt == 0:
            if not cfg.vspread: A(lr); A(lc); A(lb)
            for x in vr: A(x)
            A(kw)
        for sw in ("v_permlane16_swap_b32", "v_permlane32_swap_b32"):
            A(f"v_mov_b32 v{T}, v{M}"); A(f"{sw} v{M}, v{T}"); A(f"v_max_f32 v{M}, v{M}, v{T}")
        A(f"v_mul_f32 v{M}, s51, v{M}")
        for x in s: A(f"v_fma_f32 v{x}, v{x}, s51, -v{M}")
        for x in s: A(f"v_exp_f32 v{x}, v{x}")
        A(f"v_add_f32 v{M}, v{s[0]}, v{s[1]}"); A(f"v_add_f32 v{T}, v{s[2]}, v{s[3]}")
        for i in range(4, 12, 2):
            A(f"v_add_f32 v{M}, v{M}, v{s[i]}"); A(f"v_add_f32 v{T}, v{T}, v{s[i+1]}")
        A(f"v_add_f32 v{M}, v{M}, v{T}")
        for sw in ("v_permlane16_swap_b32", "v_permlane32_swap_b32"):
            A(f"v_mov_b32 v{T}, v{M}"); A(f"{sw} v{M}, v{T}"); A(f"v_add_f32 v{M}, v{M}, v{T}")
        A(f"v_rcp_f32 v{M}, v{M}")
        for x in s: A(f"v_mul_f32 v{x}, v{x}, v{M}")
        for j in range(4): A(f"v_cvt_pk_bf16_f32 v{PB(qt)+j}, v{s[2*j]}, v{s[2*j+1]}")
        for j in range(2): A(f"v_cvt_pk_bf16_f32 v{S(2,qt)+j}, v{s[8+2*j]}, v{s[9+2*j]}")
        if qt == 0: A(kr); A(kc); A(kb)
        base = cur[0]
        def lo(dt):
            cur[0] = -3000 if (cfg.u0first and dt >= 4) else base
        for dt in range(8):
            lo(dt); i = I(f"v_mfma_f32_16x16x32_bf16 {v(O(dt,qt),4)}, {v(VQ+4*dt,4)}, {v(PB(qt),4)}, 0")
            (defer if (cfg.u0hard and dt >= 4) else A)(i)
        for dt in range(8):
            lo(dt); (defer if (cfg.u0hard and dt >= 4) else A)(f"v_mfma_f32_16x16x16_bf16 {v(O(dt,qt),4)}, {v(VP+2*dt,2)}, {v(S(2,qt),2)}, {v(O(dt,qt),4)}")
        for ks in range(4):
            lo(2*ks)
            r = qb(ks, qt); k = O(2*ks+1, qt)
            E = defer if (cfg.u0hard and ks >= 2) else A
            E(f"v_cvt_pk_bf16_f32 v{r}, v{r}, v{r+1}"); E(f"v_cvt_pk_bf16_f32 v{r+1}, v{r+2}, v{r+3}")
            E(f"v_cvt_pk_bf16_f32 v{r+2}, v{k}, v{k+1}"); E(f"v_cvt_pk_bf16_f32 v{r+3}, v{k+2}, v{k+3}")
            w = I(f"ds_write_b128 v{VOW}, {v(r,4)} offset:{(ks>>1)*12288+qt*2048+(ks&1)*1024}"); w.r = w.r | {('x','bar2')}
            E(w)
            stores[qt, ks] = f"buffer_store_dwordx4 {v(r,4)}, v{VOG}, {srd(SWS)}, s{54+(ks>>1)*2+(qt>>1)} offen offset:{(qt&1)*2048+(ks&1)*1024} sc1"
    cur[0] = 5000
    order = [(0,0),(0,1),(0,2),(0,3),(1,0),(1,1),(2,0),(2,1)]
    late = [(1,2),(1,3),(2,2),(2,3)]
    if cfg.u0first:
        order = [(0,0),(0,1),(1,0),(1,1),(2,0),(2,1)]; late = [(0,2),(0,3)] + late
    if not cfg.no_ostore:
        for k in order: A(stores[k])
    if D:
        first = True
        for x in D:
            x = x if isinstance(x, I) else I(x)
            if x.kind == 'mfma' and not x.srcC: x.r = x.r | {('v', PB(2)+3)}
            cur[0] = -3000; A(x)
    if cfg.sched: L = schedule(L, verbose=True, bias=bias)
    return L, ([] if cfg.no_ostore else [stores[k] for k in late])

def compute():
    L = []; A = L.append
    A("s_and_b32 s44, s7, 1"); A("s_lshr_b32 s45, s7, 1")
    A("v_and_b32 v23, 15, v0"); A("v_lshrrev_b32 v24, 4, v0"); A("v_bfe_u32 v25, v0, 2, 2")
    A("v_and_b32 v26, 3, v0"); A("v_and_b32 v27, 1, v24"); A("v_lshrrev_b32 v28, 1, v24"); A("v_lshlrev_b32 v26, 3, v26")
    A("v_lshl_add_u32 v29, v27, 2, v25")
    A("v_mul_u32_u24 v20, 1056, v29"); A("v_add_u32 v20, v20, v26")
    A("v_lshl_add_u32 v30, v28, 9, v20")
    A("s_lshl_b32 s46, s45, 8"); A(f"s_add_u32 s46, s46, {SLOT_C}"); A(f"v_add_u32 v{VA}, s46, v30")
    A("v_lshl_add_u32 v30, v28, 8, v20"); A("s_lshl_b32 s46, s45, 7"); A(f"v_add_u32 v{VM}, s46, v30"); A(f"v_mov_b32 v{VML}, v{VM}")
    A("v_lshl_add_u32 v30, v28, 7, v20"); A("s_lshl_b32 s46, s45, 6"); A(f"s_add_u32 s46, s46, {UB}"); A(f"v_add_u32 v{VU}, s46, v30")
    A("v_lshrrev_b32 v30, 1, v23"); A("v_xor_b32 v30, v30, v24"); A("v_lshlrev_b32 v30, 4, v30"); A("v_lshl_add_u32 v30, v23, 7, v30")
    A("s_mul_i32 s47, s44, 6144"); A(f"s_add_u32 s46, s47, {SLOT_C+QW}")
    A(f"v_add_u32 v{VB0}, s46, v30"); A("v_xor_b32 v30, 64, v30"); A(f"v_add_u32 v{VB1}, s46, v30")
    A("v_and_b32 v31, 3, v0")
    A(f"v_mul_u32_u24 v30, {KP}, v25"); A("v_lshl_add_u32 v30, v31, 8, v30"); A("v_lshl_add_u32 v30, v27, 3, v30")
    A(f"s_mul_i32 s46, s44, {KPB}"); A(f"s_add_u32 s46, s46, {KB}"); A("v_add_u32 v30, s46, v30")
    A("v_xor_b32 v31, v31, v28"); A(f"v_lshl_add_u32 v{VK0}, v31, 4, v30")
    A("v_xor_b32 v31, 2, v31"); A(f"v_lshl_add_u32 v{VK1}, v31, 4, v30")
    A("v_lshl_add_u32 v22, v24, 2, v25")
    A("v_lshl_add_u32 v30, v22, 8, v26")
    A(f"s_mul_i32 s46, s44, {VPB}"); A(f"s_add_u32 s46, s46, {VB}"); A("v_add_u32 v30, s46, v30")
    for dt in range(8):
        A(f"v_xor_b32 v31, {dt}, v29"); A(f"v_lshl_add_u32 v{VV+dt}, v31, 5, v30")
    A(f"v_lshlrev_b32 v{VL16}, 4, v0")
    A("s_mul_i32 s46, s45, 24576"); A("s_add_u32 s46, s46, s47")
    A(f"v_add_u32 v{VOG}, s46, v{VL16}"); A(f"v_add_u32 v{VOW}, {OB}, v{VOG}")
    A(f"s_add_u32 s46, s47, {OB}"); A(f"v_add_u32 v{VO}, s46, v{VL16}")
    for i in range(48): A(f"v_mov_b64 {v(ACC+2*i,2)}, 0")
    A("v_mov_b32 v22, 0")
    A(f"v_and_b32 v{VRA}, 7, v0"); A(f"v_lshlrev_b32 v{VRA}, 2, v{VRA}"); A(f"v_add_u32 v{VRA}, {SYNC}, v{VRA}")
    A("s_lshl_b32 s46, s7, 2"); A(f"s_add_u32 s46, s46, {SYNC+16}"); A(f"v_mov_b32 v{VDA}, s46"); A(f"v_mov_b32 v{VD}, 64")
    A("s_and_b32 s46, s2, 7"); A("s_lshl3_add_u32 s46, s46, s5")
    A("s_lshl2_add_u32 s46, s46, s71"); A("s_mul_i32 s54, s46, 49152")
    A("s_lshl_b32 s52, s46, 8"); A("s_lshl3_add_u32 s52, s7, s52"); A(f"s_add_u32 s52, s52, {FL1}")
    A("s_add_u32 s55, s54, 4096"); A("s_add_u32 s56, s54, 12288"); A("s_add_u32 s57, s54, 16384")
    A("s_lshl3_add_u32 s47, s4, s5")
    A("s_lshl2_add_u32 s46, s47, s71"); A("s_lshl2_add_u32 s46, s46, s7")
    A("s_lshl_b32 s53, s46, 7"); A("s_lshl3_add_u32 s53, s3, s53"); A(f"s_add_u32 s53, s53, {FL2}")
    A("s_lshl2_add_u32 s46, s46, s3"); A("s_mul_i32 s60, s46, 6144"); A(f"s_add_u32 s60, s60, {PART}")
    A("s_lshl4_add_u32 s46, s47, s6"); A("s_lshl2_add_u32 s46, s46, s7")
    A("s_lshl_b32 s86, s46, 3"); A(f"s_add_u32 s86, s86, {FL3}")
    A("s_mul_i32 s87, s46, 3072"); A(f"s_add_u32 s87, s87, {PART3}")
    A("s_mov_b32 s51, 0x3e0293ee")
    A(f"s_mov_b32 s48, {SLOT_C}"); A("s_mov_b32 s49, 9")
    A(f"s_mov_b32 s58, {nib(MPOS) & 0xffffffff}"); A(f"s_mov_b32 s59, {nib(MPOS) >> 32}"); A(f"s_mov_b32 s61, {-4*OSL & 0xffffffff}"); A(f"s_mov_b32 s50, {OSL}")
    A("s_mov_b32 s85, 0"); A("s_mov_b32 s88, 1")
    A("s_waitcnt lgkmcnt(0)")
    mk_srd(A, SWS, 42, WS); mk_srd(A, SDBG, 82, 256)
    A("s_add_u32 s83, s52, 128")
    A("s_add_u32 s46, s2, s7"); A("s_cmp_lg_u32 s46, 0"); A("s_cbranch_scc1 L_nn")
    A("s_memrealtime s[46:47]"); A("s_waitcnt lgkmcnt(0)"); A("s_or_b32 s46, s46, 1")
    A(f"v_mov_b32 v{VN}, s46"); A(f"v_mov_b32 v{VN+1}, s47")
    A("s_mov_b64 exec, 1")
    A(f"buffer_store_dwordx2 {v(VN,2)}, v22, {srd(SDBG)}, 0 offen sc1")
    A("s_mov_b64 exec, -1")
    A("L_nn:")
    if cfg.prio: A(f"s_setprio {cfg.prio}")
    bar(A)
    L.extend(rt(0))
    L.extend(q_reads(0, 0))
    A("s_branch L_q_h1")
    out = fix(L)
    r = q_reads(0, 0)
    g2 = [[f"v_add_u32 v{VA}, s47, v{VA}"], [r[0], f"v_add_u32 v{VB0}, s47, v{VB0}"], [r[1], f"v_add_u32 v{VB1}, s47, v{VB1}"]] + [[x] for x in r[2:]]
    nm = (lambda M: ["s_nop 2"]*len(M)) if cfg.nomfmaq else (lambda M: M)
    H2 = ["L_q_top:"] + weave(nm(q_mfma(1)), g2)
    r = q_reads(1, 1)
    g1 = [[x] for x in r] + [[f"s_add_u32 s46, s48, {QS}", f"s_cmp_eq_u32 s46, {LDS_Q_END}"], ["s_cselect_b32 s46, 0, s46", "s_sub_u32 s47, s46, s48"],
                             ["s_mov_b32 s48, s46", "s_sub_u32 s49, s49, 1"], [] if cfg.prof else ["s_cmp_lg_u32 s49, 0"]]
    H1 = ["L_q_h1:"] + weave(nm(q_mfma(0)), g1)
    tail = ["s_waitcnt lgkmcnt(0)"] + L_(bar) + (["s_cmp_lg_u32 s49, 0"] if cfg.prof else []) + ["s_cbranch_scc1 L_q_top"]
    L = H2 + H1 + tail
    L += rt(1) + [f"buffer_load_dwordx2 {v(VN,2)}, v22, {srd(SDBG)}, 0 offen sc1"]
    att, late = attention(q_mfma(1))
    L += att + rt(2)
    L += L_(stamp, False)
    L += ["s_mov_b32 s48, 0", "s_mov_b32 s49, 0", "s_waitcnt lgkmcnt(0)", f"ds_write_b32 v{VDA}, v{VD}", f"v_add_u32 v{VDA}, 16, v{VDA}", f"v_mov_b32 v{VD}, 0",
          f"s_mov_b32 s89, {cfg.spin}", "L_p0:", f"ds_read_b32 v{VR}, v{VRA}", "s_waitcnt lgkmcnt(0)", f"v_cmp_ge_u32 vcc, s49, v{VR}",
          "s_sub_u32 s89, s89, 1", "s_cbranch_scc1 L_p0x", "s_cbranch_vccnz L_p0", "L_p0x:"]
    L += L_(stamp, False)
    L += w_reads(0, 0, True)
    salu = [["s_lshr_b64 s[58:59], s[58:59], 4"], ["s_and_b32 s46, s58, 15"], [f"s_mul_i32 s46, s46, {MSL}"], ["s_cmp_eq_u32 s48, 3"], ["s_cselect_b32 s47, s61, s50"],
            ["s_add_u32 s48, s48, 1"], ["s_cmp_eq_u32 s48, 5"], ["s_cselect_b32 s48, 0, s48"], ["s_add_u32 s49, s49, 1"]]
    stubs = []
    def chk(g, i, tag):
        g[i] += ["s_getreg_b32 s84, hwreg(HW_REG_IB_STS, 0, 4)"]
        g[i+1] += ["s_cmp_le_i32 s84, s85"]
        g[i+2] += [f"s_cbranch_scc1 L_st{tag}", f"L_bk{tag}:"]
        stubs.extend([f"L_st{tag}:", "s_call_b64 s[94:95], L_send", f"s_branch L_bk{tag}"])
    def h1(own, first=False, extra=[], lim=None):
        r = w_reads(1, 1, own); M = w_mfma(0, own, first)
        n = len(M)
        k = max(5, len(r) - 6)
        r = r[:k] + [f"ds_read_b32 v{VR}, v{VRA}"] + r[k:]
        g = [([r[i]] if i < len(r) else []) + (salu[i] if i < len(salu) else []) for i in range(n)]
        for i, e in enumerate(extra): g[min(n-1, i // 2 + 2)].append(e)
        if own: chk(g, 11, "b%d" % first)
        if extra: g[n-1] += ["s_or_b32 s88, s88, 4", "s_mov_b32 s85, 0"]
        g[n-2].append(f"v_cmp_ge_u32 vcc, s49, v{VR}")
        if lim: g[n-1].append(f"s_cmp_lt_u32 s49, {lim}")
        return weave(M, g)
    def h2(own, nown, n):
        r = w_reads(0, 0, nown); M = w_mfma(1, own)
        ad = [f"v_add_u32 v{VM}, s46, v{VML}", f"v_add_u32 v{VO}, s47, v{VO}"] + ([f"v_add_u32 v{VU}, {USL}, v{VU}"] if nown else []) + [f"v_add_u32 v{VD}, 1, v{VD}"]
        g = [([r[i-1]] if 1 <= i <= len(r) else []) + ([ad[i]] if i < len(ad) else []) for i in range(len(M))]
        g[-1].append(f"ds_write_b32 v{VDA}, v{VD}")
        g[0] += [f"s_cbranch_vccnz L_spin{n}", f"L_go{n}:"]
        chk(g, 4, f"a{n}")
        return weave(M, g)
    def top(n): return L_(stamp, False) + (["s_lshl_b64 s[96:97], s[96:97], 4"] if cfg.prof else [])
    def sig(so):
        if cfg.ssig: return [f"v_readfirstlane_b32 s92, v{VN}", f"v_readfirstlane_b32 s93, v{VN+1}", "s_nop 3", f"s_atomic_swap_x2 s[92:93], s[28:29], s{so}"]
        return ["s_mov_b64 exec, 1", f"buffer_store_dwordx2 {v(VN,2)}, v22, {srd(SWS)}, s{so} offen sc1", "s_mov_b64 exec, -1"]
    def ts(r): return [] if not cfg.prof else [f"s_mov_b32 s{r}, s64"]
    def send():
        F = ["L_send:", "s_waitcnt vmcnt(0)"]
        if not cfg.nosync:
            F += [f"s_mov_b32 s89, {cfg.spin}", "L_fn:", f"v_readfirstlane_b32 s92, v{VN}", f"v_readfirstlane_b32 s93, v{VN+1}", "s_sub_u32 s89, s89, 1", "s_cbranch_scc1 L_fg",
                  "s_cmp_lg_u32 s92, 0", "s_cbranch_scc1 L_fg",
                  f"buffer_load_dwordx2 {v(VN,2)}, v22, {srd(SDBG)}, 0 offen sc1", "s_waitcnt vmcnt(0)", "s_branch L_fn", "L_fg:"]
        F += ["s_bitcmp1_b32 s88, 0", "s_cbranch_scc0 L_s1", "s_atomic_swap_x2 s[92:93], s[28:29], s52"] + late + ["s_xor_b32 s88, s88, 3"] + ts(34) + ["s_setpc_b64 s[94:95]", "L_s1:"]
        F += ["s_bitcmp1_b32 s88, 1", "s_cbranch_scc0 L_s2", "s_atomic_swap_x2 s[92:93], s[28:29], s83"] + ts(36) + ["L_s2:"]
        F += ["s_bitcmp1_b32 s88, 2", "s_cbranch_scc0 L_s3", "s_atomic_swap_x2 s[92:93], s[28:29], s86"] + ts(38) + ["L_s3:"]
        F += ["s_mov_b32 s88, 0", "s_mov_b32 s85, -1"] + ["s_setpc_b64 s[94:95]"]
        return F
    def flagblk(n):
        F = [f"L_spin{n}:"] + (["s_ff1_i32_b64 s98, vcc", "s_add_u32 s98, s98, 1", "s_or_b32 s96, s96, s98"] if cfg.prof else []) + \
             [f"s_mov_b32 s82, {cfg.spin}", f"L_sp{n}:", "s_cmp_eq_u32 s88, 0", f"s_cbranch_scc1 L_sq{n}", "s_call_b64 s[94:95], L_send", f"L_sq{n}:",
              f"ds_read_b32 v{VR}, v{VRA}", "s_waitcnt lgkmcnt(0)", f"v_cmp_ge_u32 vcc, s49, v{VR}",
              "s_sub_u32 s82, s82, 1", f"s_cbranch_scc1 L_go{n}", f"s_cbranch_vccnz L_sp{n}", f"s_branch L_go{n}"]
        return F
    uepi = []
    for qt in range(3):
        a, b = a2(4, qt), a2(5, qt)
        uepi += [f"v_cvt_pk_bf16_f32 v{PKU+4*qt}, v{a}, v{a+1}", f"v_cvt_pk_bf16_f32 v{PKU+4*qt+1}, v{a+2}, v{a+3}",
                 f"v_cvt_pk_bf16_f32 v{PKU+4*qt+2}, v{b}, v{b+1}", f"v_cvt_pk_bf16_f32 v{PKU+4*qt+3}, v{b+2}, v{b+3}",
                 f"buffer_store_dwordx4 {v(PKU+4*qt,4)}, v{VL16}, {srd(SWS)}, s87 offen offset:{qt*1024} sc1"]
    L += h1(True, True)
    L += ["L_o_top:"] + top(0) + h2(True, True, 0) + h1(True, lim=4) + ["s_cbranch_scc1 L_o_top"]
    L += rt(3) + top(1) + h2(True, False, 1) + h1(False, extra=uepi)
    L += ["L_r_top:"] + top(2) + h2(False, False, 2) + h1(False, lim=16) + ["s_cbranch_scc1 L_r_top"]
    L += L_(stamp, False)
    a = P2[1]
    def fin(own):
        F = []
        for i in range(6):
            qt = i >> 1
            for f in (2*(i&1), 2*(i&1)+1):
                F.append(f"v_mfma_f32_16x16x32_bf16 {v(a2(f,qt),4)}, {v(a+4*f,4)}, {v(a+24+4*qt,4)}, {v(a2(f,qt),4)}")
        for i in range(6):
            x, y = a2(2*(i&1), i>>1), a2(2*(i&1)+1, i>>1)
            F += [f"v_cvt_pk_bf16_f32 v{PK+4*i}, v{x}, v{x+1}", f"v_cvt_pk_bf16_f32 v{PK+4*i+1}, v{x+2}, v{x+3}",
                  f"v_cvt_pk_bf16_f32 v{PK+4*i+2}, v{y}, v{y+1}", f"v_cvt_pk_bf16_f32 v{PK+4*i+3}, v{y+2}, v{y+3}"]
            if own: F.append(f"ds_write_b128 v{VL16}, {v(PK+4*i,4)} offset:{i*1024}")
            else: F.append(f"buffer_store_dwordx4 {v(PK+4*i,4)}, v{VL16}, {srd(SWS)}, s{60 + (i>>2)} offen offset:{(i&3)*1024} sc1")
        return schedule(F)
    L += ["L_e0:", "s_cmp_eq_u32 s88, 0", "s_cbranch_scc1 L_e1", "s_call_b64 s[94:95], L_send", "s_branch L_e0", "L_e1:"]
    L += rt(4) + ["s_waitcnt lgkmcnt(0)", "s_add_u32 s61, s60, 4096", "s_cmp_eq_u32 s7, s3", "s_cbranch_scc1 L_own"]
    L += fin(False) + L_(stamp) + ["s_waitcnt vmcnt(0)", "L_own2:"] + L_(stamp)
    L += sig(53)
    if cfg.prof:
        L += ["s_waitcnt lgkmcnt(0)"]
        L += ["s_sub_u32 s34, s34, s66", "s_sub_u32 s36, s36, s66", "s_sub_u32 s38, s38, s66", f"v_writelane_b32 v{PV}, s34, 58", f"v_writelane_b32 v{PV}, s36, 59", f"v_writelane_b32 v{PV}, s38, 60", f"v_writelane_b32 v{PV}, 0, 48"]
    dump_stamps(L.append)
    L += ["s_endpgm"]
    out += fix(L)
    out += fix(["L_own:", f"v_add_u32 v{VL16}, {LOWN}, v{VL16}", f"v_mov_b32 v{VDA}, {SYNC+48}"] + fin(True) + ["s_waitcnt lgkmcnt(0)", f"ds_write_b32 v{VDA}, v{VD}"] + L_(stamp) + ["s_branch L_own2"])
    for n in range(3): out += fix(flagblk(n))
    out += fix(send()) + fix(stubs)
    out += fix(["L_kvs:", f"s_mov_b32 s89, {cfg.spin}", "L_kvs2:", f"ds_read_b32 v{VR}, v{VRA} offset:64", "s_waitcnt lgkmcnt(0)", f"v_cmp_eq_u32 vcc, 0, v{VR}",
                "s_sub_u32 s89, s89, 1", "s_cbranch_scc1 L_kvg", "s_cbranch_vccnz L_kvs2", "s_branch L_kvg"])
    if not cfg.vspread: out += fix(["L_vls:", f"s_mov_b32 s89, {cfg.spin}", "L_vls2:", f"ds_read_b32 v{VR}, v{VRA} offset:96", "s_waitcnt lgkmcnt(0)", f"v_cmp_eq_u32 vcc, 0, v{VR}",
                "s_sub_u32 s89, s89, 1", "s_cbranch_scc1 L_vlg", "s_cbranch_vccnz L_vls2", "s_branch L_vlg"])
    return out

def main_kernel():
    ins = fix(L_(prologue)) + compute() + loader() + [I("L_end:")]
    return text(ins)
def build(path):
    hdr = open("concat_heads__gqa_block_cached__gqa_block_cached__near_ridge.s.ref").read().split("; Override launch")[0]
    s = hdr + f"; @launch grid=(256,1,1) block=(512,1,1) lds=163840\n"
    s += '.amdgcn_target "amdgcn-amd-amdhsa--gfx950"\n'
    s += mkkernel(KN, main_kernel(), vgpr=256, sgpr=102, accum=256)
    open(path, "w").write(s)
if __name__ == "__main__":
    out = sys.argv[1]
    for a in sys.argv[2:]:
        k, val = a.split("=")
        cur = getattr(cfg, k)
        setattr(cfg, k, (val == "1") if isinstance(cur, bool) else type(cur)(val.replace("_"," ") if isinstance(cur,str) else val))
    build(out)
```

```python
import sys
from asmlib import *
from mb_common import kernel as mkkernel
KN = "concat_heads__gqa_block_cached__gqa_block_cached__near_ridge_kernel"
WS = 268435456
class Cfg:
    prof = False
    ld_x = ""; ld_w = ""; ld_kv = ""; ld_wo = ""; ld_o = "sc1"
    FA = 1; FB = 3; F3 = 7
    sched = True; bias = 1000
    spin = 2000000
    prio = 0; slp = 2
    ssig = True; spoll = True; vpre = 4; rotm = True; LS = 1; allpoll = True
    vspread = True; PP = 5; NS = 2; pdelay = True; psl = 0; u0first = True; u0hard = False; q3only = False; nomfmaq = False; qorder = 1; worder = 0
    no_dma = False; nosync = False; no_ostore = False
cfg = Cfg()
QW = 33792; QS = 46080; LDS_Q_END = 138240; SLOT_C = 92160
KB = 112128; KPB = 13056; KP = 1088
VB = 138240; VPB = 12288
OR0 = 102400; OSL = 12288; OB = OR0 + OSL
MSL = 16896; UB = 4*MSL; USL = 8448
LOWN = 0
MPOS = [0,1,2,3,0,4,1,2,5,3,0,4,1,2,5,3]
MTHR = [0,0,0,0,1,2,2,3,4,4,5,6,7,8,9,10]
def nib(t): return sum(x << (4*i) for i, x in enumerate(t))
SYNC = 101376
PART = 256*49152; PART3 = PART + 1024*6144; FL1 = PART3 + 256*12288; FL2 = FL1 + 64*1024; FL3 = FL2 + 256*128
SX, SK, SV, SWQ, SWO, SWS, SOUT, SDBG = 8, 12, 16, 20, 24, 28, 72, 76
def srd(r): return f"s[{r}:{r+3}]"
def v(a, n=1): return f"v{a}" if n == 1 else f"v[{a}:{a+n-1}]"
PV = 1; PV2 = 159
def flush(A, wait=True):
    if wait: A("s_waitcnt lgkmcnt(0)")
    A("s_sub_u32 s64, s64, s66"); A("s_lshl_b64 exec, 1, s70")
    A(f"v_mov_b32 v{PV}, s64"); A(f"v_mov_b32 v{PV2}, s68"); A("s_mov_b64 exec, -1"); A("s_add_u32 s70, s70, 1")
def stamp(A, wait=True):
    if cfg.prof:
        flush(A, wait); A("s_memtime s[64:65]"); A("s_memrealtime s[68:69]")
def rt(k):
    return []
def bar(A):
    if cfg.prof: flush(A)
    A("s_barrier")
    if cfg.prof: A("s_memtime s[64:65]"); A("s_memrealtime s[68:69]")
def L_(f, *a):
    L = []; f(L.append, *a); return L
def mk_srd(A, r, ptr, size):
    A(f"s_mov_b32 s{r}, s{ptr}"); A(f"s_mov_b32 s{r+1}, s{ptr+1}")
    A(f"s_mov_b32 s{r+2}, {size}"); A(f"s_mov_b32 s{r+3}, 0x20000")
def prologue(A):
    A("s_cmp_ge_u32 s2, 256"); A("s_cbranch_scc1 L_end")
    A("s_bfe_u32 s4, s2, 0x10002")
    A("s_mul_i32 s44, s4, 40"); A("s_add_u32 s46, s0, s44"); A("s_addc_u32 s47, s1, 0")
    A("s_load_dwordx8 s[32:39], s[46:47], 0")
    A("s_load_dwordx2 s[40:41], s[46:47], 32")
    A("s_load_dwordx4 s[80:83], s[0:1], 80")
    A("s_load_dwordx2 s[42:43], s[0:1], 96")
    if cfg.prof:
        A("s_memrealtime s[62:63]"); A("s_memtime s[66:67]"); A("s_memtime s[64:65]"); A("s_memrealtime s[68:69]"); A("s_mov_b32 s70, 2"); A("s_mov_b64 s[96:97], 0")
    A("v_lshrrev_b32 v1, 6, v0")
    A("s_bfe_u32 s5, s2, 0x30003")
    A("v_readfirstlane_b32 s7, v1")
    A("s_lshr_b32 s71, s2, 6")
    A("s_and_b32 s3, s2, 3")
    A("s_lshl2_add_u32 s6, s3, s71")
    A("v_and_b32 v0, 63, v0")
    A("s_cmp_ge_u32 s7, 4"); A("s_cbranch_scc1 L_loader")
def dump_stamps(A):
    if not cfg.prof: return
    stamp(A)
    A(f"v_writelane_b32 v{PV}, s62, 0"); A(f"v_writelane_b32 v{PV}, s96, 61"); A(f"v_writelane_b32 v{PV}, s97, 62")
    A("s_memrealtime s[62:63]"); A("s_waitcnt lgkmcnt(0)"); A(f"v_writelane_b32 v{PV}, s62, 63")
    A("s_getreg_b32 s61, hwreg(HW_REG_XCC_ID)")
    A("s_lshl_b32 s61, s61, 8"); A("s_add_u32 s61, s61, s70")
    A(f"v_writelane_b32 v{PV}, s61, 1")
    A("v_lshlrev_b32 v3, 2, v0")
    A("s_lshl_b32 s61, s2, 11"); A("s_lshl_b32 s60, s7, 8"); A("s_add_u32 s61, s61, s60")
    A(f"s_add_u32 s61, s61, {WS-524288}")
    A(f"buffer_store_dword v{PV}, v3, s[28:31], s61 offen")
    A("s_sub_u32 s61, s61, 524288")
    A(f"buffer_store_dword v{PV2}, v3, s[28:31], s61 offen")
def poll(A, tag, voff, soff, off=0):
    if cfg.nosync: return
    A(f"s_mov_b32 s89, {cfg.spin}")
    A(f"L_poll{tag}:")
    A(f"buffer_load_dwordx2 v[30:31], v{voff}, {srd(SWS)}, s{soff} offen offset:{off} sc1")
    A("s_waitcnt vmcnt(0)")
    A("v_cmp_eq_u64 vcc, s[58:59], v[30:31]")
    A("s_sub_u32 s89, s89, 1")
    A("s_cbranch_scc1 L_pollx" + tag)
    A("s_nop 2")
    A("s_cmp_eq_u64 vcc, exec")
    A(f"s_cbranch_scc0 L_poll{tag}")
    A(f"L_pollx{tag}:")
def get_nonce_s(A, tag):
    A(f"s_mov_b32 s89, {cfg.spin}")
    A("v_mov_b32 v29, 0")
    A(f"L_non{tag}:")
    A(f"buffer_load_dwordx2 v[30:31], v29, {srd(SDBG)}, 0 offen sc1")
    A("s_waitcnt vmcnt(0)")
    A("v_readfirstlane_b32 s58, v30"); A("v_readfirstlane_b32 s59, v31")
    A("s_sub_u32 s89, s89, 1")
    A(f"s_cbranch_scc1 L_nonx{tag}")
    A("s_cmp_eq_u32 s58, 0")
    A(f"s_cbranch_scc1 L_non{tag}")
    A(f"L_nonx{tag}:")
def lds_wait(A, tag, vaddr, sneed):
    A(f"s_mov_b32 s89, {cfg.spin}")
    A(f"L_lw{tag}:")
    A(f"ds_read_b32 v30, v{vaddr}")
    A("s_waitcnt lgkmcnt(0)")
    A(f"v_cmp_gt_u32 vcc, {sneed}, v30")
    A("s_sub_u32 s89, s89, 1")
    A(f"s_cbranch_scc1 L_lwx{tag}")
    A(f"s_cbranch_vccz L_lwx{tag}")
    A(f"s_sleep {cfg.slp}")
    A(f"s_branch L_lw{tag}")
    A(f"L_lwx{tag}:")
def spoll(A, tag, soff, off, n):
    if cfg.nosync: return
    A(f"s_mov_b32 s89, {cfg.spin}")
    A(f"s_add_u32 s88, s{soff}, {off}")
    if n == 16: A("s_add_u32 s87, s88, 64")
    A(f"L_sp{tag}:")
    if n == 16:
        A("s_load_dwordx16 s[8:23], s[28:29], s88 glc"); A("s_load_dwordx16 s[32:47], s[28:29], s87 glc")
        regs = list(range(8, 24, 2)) + list(range(32, 48, 2))
    else:
        A("s_load_dwordx8 s[8:15], s[28:29], s88 glc"); regs = list(range(8, 16, 2))
    A("s_waitcnt lgkmcnt(0)")
    for r in regs: A(f"s_xor_b64 s[{r}:{r+1}], s[{r}:{r+1}], s[58:59]")
    for r in regs[1:]: A(f"s_or_b64 s[8:9], s[8:9], s[{r}:{r+1}]")
    A(f"s_cbranch_scc0 L_spx{tag}")
    A("s_sub_u32 s89, s89, 1")
    A(f"s_cbranch_scc0 L_sp{tag}")
    A(f"L_spx{tag}:")
def get_nonce_ss(A, tag):
    A(f"s_mov_b32 s89, {cfg.spin}")
    A(f"L_non{tag}:")
    A("s_load_dwordx2 s[58:59], s[82:83], 0 glc"); A("s_waitcnt lgkmcnt(0)")
    A("s_cmp_lg_u32 s58, 0"); A(f"s_cbranch_scc1 L_nonx{tag}")
    A("s_sub_u32 s89, s89, 1"); A(f"s_cbranch_scc0 L_non{tag}")
    A(f"L_nonx{tag}:")
STG = 64
def stage_index(A, j, dst):
    A(f"s_add_u32 s44, s48, {4*j}"); A("s_mul_i32 s45, s44, 86"); A("s_lshr_b32 s45, s45, 8")
    A("s_mul_i32 s46, s45, 3"); A("s_sub_u32 s44, s44, s46"); A("s_add_u32 s44, s44, s71"); A("s_add_u32 s44, s44, 1"); A("s_and_b32 s44, s44, 3")
    A("s_lshl_b32 s45, s45, 3"); A("s_lshr_b32 s45, 0x03010200, s45"); A("s_and_b32 s45, s45, 3"); A(f"s_lshl2_add_u32 s{dst}, s44, s45")
def stage_loads(A, j):
    A(f"s_mul_i32 s44, s{90+j}, 73728"); A("s_add_u32 s44, s44, s95")
    for i in range(16):
        if i % 4 == 0 and i: A(f"s_add_u32 s44, s44, {4*1152 if i != 8 else 28*1152}")
        A(f"buffer_load_dwordx4 {v(STG+64*j+4*i,4)}, v16, {srd(SWO)}, s44 offen offset:{(i%4)*1152} {cfg.ld_wo}")

def loader():
    L = []; A = L.append
    A("L_loader:")
    A("s_and_b32 s48, s7, 3")
    A("v_lshrrev_b32 v1, 5, v0"); A("v_lshlrev_b32 v1, 17, v1")
    A("v_and_b32 v2, 31, v0"); A("v_lshl_add_u32 v10, v2, 4, v1")
    A("s_and_b32 s57, s48, 1"); A("s_lshr_b32 s49, s48, 1")
    A("s_lshl_b32 s50, s6, 9"); A("s_lshl_b32 s44, s57, 15"); A("s_add_u32 s50, s50, s44")
    A("s_lshl_b32 s44, s49, 18"); A("s_add_u32 s50, s50, s44")
    A("s_mul_i32 s52, s48, 8448")
    A("v_lshrrev_b32 v1, 3, v0"); A("v_mul_u32_u24 v1, 1152, v1")
    A("v_and_b32 v2, 7, v0"); A("v_lshrrev_b32 v3, 4, v0"); A("v_xor_b32 v2, v2, v3")
    A("s_lshl_b32 s44, s57, 2"); A("v_xor_b32 v2, s44, v2")
    A("v_lshl_add_u32 v11, v2, 4, v1")
    A("v_xor_b32 v2, 4, v2"); A("v_lshl_add_u32 v12, v2, 4, v1")
    A("s_mul_i32 s51, s5, 110592"); A("s_mul_i32 s44, s48, 27648"); A("s_add_u32 s51, s51, s44")
    A("s_mul_i32 s53, s48, 3072"); A(f"s_add_u32 s53, s53, {QW}")
    A(f"s_mov_b32 s55, {SLOT_C}")
    A("s_mov_b32 s61, 0"); A("s_mov_b32 s88, 0")
    A("s_mov_b32 s22, 4718592"); A("s_mov_b32 s23, 0x20000"); A("s_mov_b32 s10, 884736"); A("s_mov_b32 s11, 0x20000")
    A("s_waitcnt lgkmcnt(0)")
    A("s_mov_b32 s20, s38"); A("s_mov_b32 s21, s39"); A("s_mov_b32 s8, s32"); A("s_mov_b32 s9, s33")
    stamp(A)
    A("L_lq:")
    if cfg.q3only: A("s_cmp_ge_u32 s61, 3"); A("s_cbranch_scc1 L_skipq")
    A("s_mov_b32 s44, s50"); A("s_add_u32 m0, s55, s52")
    for jj in range(8):
        if jj:
            A(f"s_add_u32 m0, m0, 1056"); A(f"s_add_u32 s44, s44, {8192 if jj != 4 else 5*8192}")
        else: A("s_add_u32 s50, s50, 524288")
        A(f"buffer_load_dwordx4 v10, {srd(SWQ)}, s44 offen {cfg.ld_w} lds")
    A("s_add_u32 m0, s55, s53"); A("s_mov_b32 s45, s51")
    for jj in range(3):
        if jj:
            A("s_add_u32 m0, m0, 1024"); A(f"s_add_u32 s45, s45, {8*1152}")
        A(f"buffer_load_dwordx4 v{11 + (jj&1)}, {srd(SX)}, s45 offen {cfg.ld_x} lds")
    A("L_skipq:")
    A("s_add_u32 s51, s51, 128")
    A(f"s_add_u32 s55, s55, {QS}"); A(f"s_cmp_eq_u32 s55, {LDS_Q_END}"); A("s_cselect_b32 s55, 0, s55")
    A("s_add_u32 s61, s61, 1")
    A("s_cmp_eq_u32 s88, 2"); A("s_cbranch_scc1 L_lq_next")
    A("s_cmp_eq_u32 s88, 1"); A("s_cbranch_scc1 L_setup")
    A("s_cmp_lt_u32 s61, 2"); A("s_cbranch_scc1 L_lq")
    A("s_mov_b32 s88, 1")
    stamp(A)
    A("s_waitcnt vmcnt(11)"); bar(A)
    A("s_branch L_lq")
    A("L_setup:")
    A("s_mov_b32 s88, 2")
    mk_srd(A, SK, 34, 3145728); mk_srd(A, SV, 36, 3145728); mk_srd(A, SWO, 40, 4718592)
    mk_srd(A, SWS, 42, WS); mk_srd(A, SOUT, 80, 1769472); mk_srd(A, SDBG, 82, 256)
    A("v_lshrrev_b32 v1, 4, v0"); A("v_and_b32 v2, 15, v0"); A("v_xor_b32 v3, v2, v1")
    A("v_lshlrev_b32 v3, 4, v3"); A("v_lshl_add_u32 v13, v1, 8, v3")
    A(f"s_mul_i32 s44, s49, {KPB}"); A(f"s_mul_i32 s45, s57, {6*KP}"); A("s_add_u32 s44, s44, s45"); A(f"s_add_u32 s44, s44, {KB}")
    A("v_add_u32 v13, s44, v13")
    A("v_mul_u32_u24 v16, 9216, v1"); A("v_lshl_add_u32 v16, v2, 4, v16")
    A("v_lshlrev_b32 v26, 3, v2")
    A("v_bfe_u32 v2, v0, 1, 3"); A("v_xor_b32 v2, v2, v1"); A("v_lshlrev_b32 v2, 5, v2")
    A("v_and_b32 v3, 1, v0"); A("v_lshl_add_u32 v2, v3, 4, v2"); A("v_lshl_add_u32 v14, v1, 8, v2")
    A("v_lshrrev_b32 v1, 3, v0"); A("v_mul_u32_u24 v1, 9216, v1"); A("v_and_b32 v2, 7, v0"); A("v_lshl_add_u32 v17, v2, 4, v1")
    A("s_lshl1_add_u32 s56, s5, s49"); A("s_lshl4_add_u32 s56, s56, s6"); A("s_mul_i32 s56, s56, 12288")
    A("s_mul_i32 s44, s57, 6144"); A("s_add_u32 s56, s56, s44")
    A("s_mov_b32 s84, s56")
    A(f"s_mul_i32 s85, s49, {VPB}"); A("s_add_u32 s85, s85, s44"); A(f"s_add_u32 s85, s85, {VB}")
    A("v_lshlrev_b32 v25, 4, v0")
    A("v_and_b32 v18, 3, v0"); A("v_lshlrev_b32 v18, 2, v18"); A(f"v_add_u32 v18, {SYNC+32}, v18")
    A("s_lshl_b32 s44, s48, 2"); A(f"s_add_u32 s44, s44, {SYNC}"); A("v_mov_b32 v19, s44"); A(f"v_mov_b32 v20, {SYNC+48}")
    A("s_mul_i32 s95, s3, 1179648"); A("s_lshl_b32 s44, s71, 8"); A("s_add_u32 s95, s95, s44")
    for j in range(3): stage_index(A, j, 90+j)
    A("s_and_b32 s44, s2, 7"); A("s_lshl3_add_u32 s44, s44, s5")
    A("s_lshl_b32 s93, s44, 10"); A(f"s_add_u32 s93, s93, {FL1}")
    A("s_mul_i32 s54, s44, 196608")
    A("L_lq_next:")
    PP = cfg.PP; NP = 16*cfg.NS
    def stg(n):
        cnt = 0
        for P in range((n-3)*PP, min((n-2)*PP, NP)):
            j, i = divmod(P, 16)
            row = i if i < 8 else i + 24
            if i == 0 or P == (n-3)*PP or row % 4 == 0 or i == 8:
                A(f"s_mul_i32 s44, s{90+j}, 73728"); A("s_add_u32 s44, s44, s95"); A(f"s_add_u32 s44, s44, {(row - row % 4)*1152}")
            A(f"buffer_load_dwordx4 {v(STG+4*P,4)}, v16, {srd(SWO)}, s44 offen offset:{(row%4)*1152} {cfg.ld_wo}")
            cnt += 1
        return cnt
    ex = {2: 0}
    A("s_cmp_gt_u32 s61, 8"); A("s_cbranch_scc1 L_k8")
    A("s_mov_b32 m0, s85"); A("s_add_u32 s85, s85, 1024")
    A(f"buffer_load_dwordx4 v14, {srd(SV)}, s84 offen {cfg.ld_kv} lds")
    A("s_add_u32 s84, s84, 1024"); A("v_xor_b32 v14, 128, v14")
    for n in range(3, 9):
        A(f"s_cmp_eq_u32 s61, {n}"); A(f"s_cbranch_scc0 L_k{n}")
        A(f"buffer_load_dwordx4 {v(40+4*(n-3),4)}, v25, {srd(SK)}, s56 offen offset:{(n-3)%4*1024} {cfg.ld_kv}")
        if n == 6: A("s_add_u32 s56, s56, 4096")
        ex[n] = 2 + stg(n)
        A(f"s_waitcnt vmcnt({11+ex[n]+ex[n-1]})")
        A("s_branch L_lq_b")
        A(f"L_k{n}:")
    e9 = stg(9)
    assert 7*PP >= NP
    A(f"s_waitcnt vmcnt({11+e9+ex[8]-2})")
    A("L_lq_b:")
    bar(A)
    A("s_cmp_lt_u32 s61, 9"); A("s_cbranch_scc1 L_lq")
    A("v_mov_b32 v29, 0"); A(f"buffer_load_dwordx2 v[32:33], v29, {srd(SDBG)}, 0 offen sc1")
    for jj in range(6): A(f"ds_write_b128 v13, {v(40+4*jj,4)} offset:{jj*KP}")
    A("v_min_u32 v2, 31, v0"); A("v_and_b32 v3, 20, v2"); A("v_lshlrev_b32 v2, 2, v2"); A(f"v_add_u32 v2, {SYNC}, v2")
    A("v_cmp_eq_u32 vcc, 20, v3"); A("v_cndmask_b32 v30, 0, 1, vcc"); A("ds_write_b32 v2, v30")
    A(f"s_waitcnt vmcnt({e9+1})"); bar(A)
    A("s_waitcnt vmcnt(0)")
    A("v_readfirstlane_b32 s58, v32"); A("v_readfirstlane_b32 s59, v33"); A("s_cmp_lg_u32 s58, 0"); A("s_cbranch_scc1 L_nok")
    get_nonce_s(A, "l")
    A("L_nok:")
    A(f"s_mov_b32 s98, {nib(MPOS) & 0xffffffff}"); A(f"s_mov_b32 s99, {nib(MPOS) >> 32}")
    A(f"s_mov_b32 s100, {nib(MTHR) & 0xffffffff}"); A(f"s_mov_b32 s101, {nib(MTHR) >> 32}")
    A("s_lshl_b32 s44, s48, 2"); A("s_add_u32 s44, s44, 16"); A("s_lshr_b64 s[98:99], s[98:99], s44"); A("s_lshr_b64 s[100:101], s[100:101], s44")
    A(f"v_mov_b32 v22, {SYNC+52}"); A(f"v_mov_b32 v23, {SYNC+56}"); A("v_mov_b32 v24, 1")
    A("s_lshl2_add_u32 s44, s71, s48"); A("s_mul_i32 s44, s44, 73728"); A("s_add_u32 s45, s44, s95")
    A(f"s_mul_i32 s47, s48, {MSL}"); A("s_mul_i32 s46, s3, 1179648")
    A("s_waitcnt lgkmcnt(0)"); bar(A)
    def m_dma(first_hook=None):
        if not cfg.rotm:
            A("s_mov_b32 m0, s47")
            for i in range(16):
                if i: A("s_add_u32 m0, m0, 1056"); A(f"s_add_u32 s45, s45, {1152 if i != 8 else 25*1152}")
                else: A("s_nop 0")
                if first_hook and i == cfg.vpre: first_hook()
                A(f"buffer_load_dwordx4 v16, {srd(SWO)}, s45 offen {cfg.ld_wo} lds")
            return
        A("s_lshl_b32 s55, s5, 1")
        for i in range(16):
            A("s_mul_i32 s56, s55, 1056"); A("s_add_u32 m0, s56, s47")
            A("s_and_b32 s56, s55, 8"); A("s_mul_i32 s56, s56, 3"); A("s_add_u32 s56, s56, s55"); A("s_mul_i32 s56, s56, 1152"); A("s_add_u32 s56, s56, s45")
            if first_hook and i == cfg.vpre: first_hook()
            A(f"buffer_load_dwordx4 v16, {srd(SWO)}, s56 offen {cfg.ld_wo} lds")
            if i < 15: A("s_add_u32 s55, s55, 1"); A("s_and_b32 s55, s55, 15")
    def vsig():
        A(f"s_waitcnt vmcnt({cfg.vpre})"); A("ds_write_b32 v19, v24 offset:96"); stamp(A)
    m_dma(None if cfg.vspread else vsig)
    A("s_add_u32 s45, s44, s46"); A("s_add_u32 s45, s45, 1024")
    A(f"s_mul_i32 s46, s48, {USL}"); A(f"s_add_u32 s47, s46, {UB}")
    A("s_mov_b32 s55, s5" if cfg.rotm else "s_mov_b32 s55, 0")
    for i in range(8):
        A("s_mul_i32 s56, s55, 1056"); A("s_add_u32 m0, s56, s47"); A("s_mul_i32 s56, s55, 1152"); A("s_add_u32 s56, s56, s45")
        A(f"buffer_load_dwordx4 v17, {srd(SWO)}, s56 offen {cfg.ld_wo} lds")
        if i < 7: A("s_add_u32 s55, s55, 1"); A("s_and_b32 s55, s55, 7")
    A("s_add_u32 s60, s48, 4"); A("v_mov_b32 v31, s60"); A("s_waitcnt vmcnt(0)"); A("ds_write_b32 v19, v31")
    stamp(A)
    A("v_add_u32 v21, -16, v18")
    A("s_mov_b32 s61, 0")
    A("L_st:")
    if not cfg.nosync:
        A("s_lshr_b32 s44, s90, 2"); A("s_lshl_b32 s44, s44, 8"); A("s_and_b32 s45, s90, 1"); A("s_lshl_b32 s45, s45, 7"); A("s_add_u32 s44, s44, s45")
        A("s_and_b32 s45, s90, 2"); A("s_lshl_b32 s45, s45, 3"); A("s_add_u32 s44, s44, s45"); A("s_add_u32 s88, s44, s93")
        if cfg.pdelay:
            A("s_cmp_eq_u32 s61, 0"); A("s_cbranch_scc0 L_fp0")
            lds_wait(A, "pd", 21, 1)
            A("L_fp0:")
        A(f"s_mov_b32 s89, {cfg.spin}")
        A("L_fp1:")
        A("s_load_dwordx4 s[8:11], s[28:29], s88 glc")
        A("s_waitcnt lgkmcnt(0)")
        A("s_xor_b64 s[8:9], s[8:9], s[58:59]"); A("s_xor_b64 s[10:11], s[10:11], s[58:59]"); A("s_or_b64 s[8:9], s[8:9], s[10:11]")
        A("s_cbranch_scc0 L_fpx")
        if cfg.psl: A(f"s_sleep {cfg.psl}")
        A("s_sub_u32 s89, s89, 1"); A("s_cbranch_scc0 L_fp1")
        A("L_fpx:")
    stamp(A)
    A("s_and_b32 s60, s100, 15"); A("s_and_b32 s44, s98, 15"); A(f"s_mul_i32 s47, s44, {MSL}")
    A("s_lshr_b64 s[98:99], s[98:99], 16"); A("s_lshr_b64 s[100:101], s[100:101], 16")
    A("s_mul_i32 s45, s90, 73728"); A("s_add_u32 s45, s45, s95")
    A("s_mov_b32 s84, s60"); A("v_add_u32 v33, s47, v25")
    if cfg.NS: A(f"s_cmp_lt_u32 s61, {4*cfg.NS}"); A("s_cbranch_scc1 L_md2")
    if cfg.NS < 3:
        lds_wait(A, "m", 18, "s60")
        m_dma()
    A("L_md2:")
    stamp(A)
    A("s_add_u32 s60, s48, s61")
    lds_wait(A, "o", 18, "s60")
    A("s_mul_i32 s44, s60, 52"); A("s_lshr_b32 s44, s44, 8"); A("s_mul_i32 s44, s44, 5"); A("s_sub_u32 s44, s60, s44")
    A(f"s_mul_i32 s44, s44, {OSL}"); A(f"s_add_u32 m0, s44, {OR0}")
    A(f"s_mul_i32 s44, s90, 12288"); A("s_add_u32 s44, s44, s54")
    for ii in range(12):
        if ii % 4 == 0 and ii: A("s_add_u32 m0, m0, 4096"); A("s_add_u32 s44, s44, 4096")
        A(f"buffer_load_dwordx4 v25, {srd(SWS)}, s44 offen offset:{(ii%4)*1024} {cfg.ld_o} lds")
    for j in range(cfg.NS):
        A(f"s_cmp_eq_u32 s61, {4*j}"); A(f"s_cbranch_scc0 L_md3{j}")
        lds_wait(A, f"m0{j}", 18, "s84")
        for i in range(16): A(f"ds_write_b128 v33, {v(STG+64*j+4*i,4)} offset:{i*1056}")
        A(f"L_md3{j}:")
    A("s_add_u32 s60, s60, 8"); A("v_mov_b32 v31, s60"); A("s_mov_b32 s90, s91"); A("s_mov_b32 s91, s92")
    A("s_waitcnt vmcnt(0) lgkmcnt(0)"); A("ds_write_b32 v19, v31")
    stamp(A)
    A("s_add_u32 s61, s61, 4"); A("s_cmp_lt_u32 s61, 12"); A("s_cbranch_scc1 L_st")
    A("s_setprio 3")
    A("s_mov_b32 s86, 0x3f80"); A("s_mov_b32 s85, 0x3f800000")
    A("s_lshl3_add_u32 s47, s4, s5")
    A("s_cmp_eq_u32 s48, 0"); A("s_cbranch_scc1 L_fin_u")
    A("s_sub_u32 s48, s48, 1")
    A("s_lshl2_add_u32 s44, s47, s71"); A("s_lshl2_add_u32 s44, s44, s3")
    A("s_lshl_b32 s51, s44, 7"); A(f"s_add_u32 s51, s51, {FL2}")
    A("s_mul_i32 s50, s44, 24576"); A("s_lshl_b32 s45, s48, 11"); A("s_add_u32 s50, s50, s45"); A(f"s_add_u32 s50, s50, {PART}")
    for i in range(3):
        A(f"s_add_u32 s46, s3, {i+1}"); A("s_and_b32 s46, s46, 3"); A("s_mul_i32 s46, s46, 6144"); A(f"s_add_u32 s{52+i}, s50, s46")
    A(f"s_add_u32 s45, s45, {LOWN}"); A("v_add_u32 v29, s45, v25")
    A("v_and_b32 v27, 3, v0"); A("v_lshlrev_b32 v27, 3, v27")
    A("v_and_b32 v2, 15, v0"); A("v_mul_u32_u24 v2, 2304, v2"); A("v_lshrrev_b32 v3, 4, v0"); A("v_lshl_add_u32 v28, v3, 3, v2")
    A("s_and_b32 s44, s3, 1"); A("s_lshl1_add_u32 s44, s5, s44"); A("s_mul_i32 s60, s44, 110592")
    A("s_mul_i32 s44, s48, 36864"); A("s_add_u32 s60, s60, s44")
    A("s_mul_i32 s44, s4, 1152"); A("s_add_u32 s60, s60, s44"); A("s_lshl_b32 s44, s71, 8"); A("s_add_u32 s60, s60, s44")
    A("s_lshr_b32 s44, s3, 1"); A("s_lshl_b32 s44, s44, 7"); A("s_add_u32 s60, s60, s44")
    lds_wait(A, "f", 20, 1)
    stamp(A)
    A("ds_read_b128 v[32:35], v29"); A("ds_read_b128 v[36:39], v29 offset:1024")
    if cfg.spoll: spoll(A, "f", 51, 0, 4)
    else: poll(A, "f", 27, 51)
    stamp(A)
    for i in range(3):
        A(f"buffer_load_dwordx4 {v(40+8*i,4)}, v25, {srd(SWS)}, s{52+i} offen sc1")
        A(f"buffer_load_dwordx4 {v(44+8*i,4)}, v25, {srd(SWS)}, s{52+i} offen offset:1024 sc1")
    A("s_waitcnt lgkmcnt(0)")
    for j in range(8):
        A(f"v_lshlrev_b32 v{64+2*j}, 16, v{32+j}"); A(f"v_and_b32 v{65+2*j}, 0xffff0000, v{32+j}")
    for i in range(3):
        A(f"s_waitcnt vmcnt({4-2*i})")
        for j in range(8):
            A(f"v_dot2_f32_bf16 v{64+2*j}, v{40+8*i+j}, s86, v{64+2*j}")
            A(f"v_dot2_f32_bf16 v{65+2*j}, v{40+8*i+j}, s85, v{65+2*j}")
    A("s_nop 2")
    for j in range(8): A(f"v_cvt_pk_bf16_f32 v{32+j}, v{64+2*j}, v{65+2*j}")
    for j in range(4): A(f"buffer_store_dwordx2 {v(32+2*j,2)}, v28, {srd(SOUT)}, s60 offen offset:{32*j}")
    A("s_branch L_fin4")
    A("L_fin_u:")
    A("s_lshl_b32 s51, s47, 9"); A(f"s_add_u32 s51, s51, {FL3}")
    A("s_mul_i32 s50, s47, 196608"); A("s_mul_i32 s44, s6, 768"); A("s_add_u32 s50, s50, s44"); A(f"s_add_u32 s50, s50, {PART3}")
    A("v_lshlrev_b32 v27, 3, v0")
    A("s_mul_i32 s44, s6, 48"); A("v_add_u32 v2, s44, v0")
    A("v_lshrrev_b32 v3, 6, v2")
    A("v_mul_u32_u24 v4, 86, v3"); A("v_lshrrev_b32 v4, 8, v4")
    A("v_mul_u32_u24 v5, 3, v4"); A("v_sub_u32 v5, v3, v5")
    A("v_and_b32 v6, 1, v4"); A("v_mul_u32_u24 v6, 48, v6"); A("v_lshl_add_u32 v6, v5, 4, v6")
    A("v_and_b32 v5, 15, v2"); A("v_add_u32 v6, v6, v5"); A("v_mul_u32_u24 v6, 2304, v6")
    A("v_lshrrev_b32 v4, 1, v4"); A("v_lshl_add_u32 v6, v4, 6, v6")
    A("v_bfe_u32 v5, v2, 4, 2"); A("v_lshl_add_u32 v28, v5, 3, v6")
    A("s_mul_i32 s60, s5, 221184"); A("s_mul_i32 s44, s4, 1152"); A("s_add_u32 s60, s60, s44"); A("s_add_u32 s60, s60, 1024")
    poll(A, "u", 27, 51)
    stamp(A)
    A("s_mov_b32 exec_hi, 0xffff")
    for i in range(16):
        A(f"buffer_load_dwordx4 {v(40+4*i,4)}, v25, {srd(SWS)}, s50 offen sc1")
        if i < 15: A("s_add_u32 s50, s50, 12288")
    A("s_waitcnt vmcnt(15)")
    for j in range(4):
        A(f"v_lshlrev_b32 v{32+2*j}, 16, v{40+j}"); A(f"v_and_b32 v{33+2*j}, 0xffff0000, v{40+j}")
    for i in range(1, 16):
        A(f"s_waitcnt vmcnt({15-i})")
        for j in range(4):
            A(f"v_dot2_f32_bf16 v{32+2*j}, v{40+4*i+j}, s86, v{32+2*j}")
            A(f"v_dot2_f32_bf16 v{33+2*j}, v{40+4*i+j}, s85, v{33+2*j}")
    A("s_nop 2")
    for j in range(4): A(f"v_cvt_pk_bf16_f32 v{40+j}, v{32+2*j}, v{33+2*j}")
    A(f"buffer_store_dwordx2 v[40:41], v28, {srd(SOUT)}, s60 offen")
    A(f"buffer_store_dwordx2 v[42:43], v28, {srd(SOUT)}, s60 offen offset:32")
    A("s_mov_b64 exec, -1")
    A("L_fin4:")
    if cfg.prof: A("s_waitcnt vmcnt(0)"); stamp(A)
    dump_stamps(A)
    A("s_branch L_end")
    if cfg.no_dma: L = [x for x in L if not (x.startswith('buffer_load_dwordx4') and (x.endswith('lds') or 's[24:27]' in x or 's[12:15]' in x))]
    return fix(L)

VA, VB0, VB1, VK0, VK1, VV, VOW, VOG, VM, VU, VO, VL16 = 2, 3, 4, 5, 6, 7, 15, 16, 17, 18, 19, 21
VRA, VDA, VR, VD = 29, 30, 31, 20
VN = 156; VML = 158
SET = {1: (32, 64), 0: (76, 108)}
ACC = 160
def acc(qt, dt): return ACC + qt*32 + dt*4
KF = 76
def q_reads(ks, st):
    a, b = SET[st]; R = []
    for qt in range(3): R.append(f"ds_read_b128 {v(b+4*qt,4)}, v{VB0+ks} offset:{qt*2048}")
    for dt in range(8):
        for half in range(2):
            R.append(f"ds_read_b64_tr_b16 {v(a+4*dt+2*half,2)}, v{VA} offset:{ks*16896+half*8448+dt*32}")
    return R[3:5] + R[0:3] + R[5:]
def q_mfma(st):
    a, b = SET[st]
    if cfg.qorder == 0: od = [(dt, qt) for dt in range(8) for qt in range(3)]
    elif cfg.qorder == 1: od = [(dt, qt if dt % 2 == 0 else 2-qt) for dt in range(8) for qt in range(3)]
    elif cfg.qorder == 2: od = [(2*d2 + (i if qt % 2 == 0 else 1-i), qt) for d2 in range(4) for qt in range(3) for i in range(2)]
    return [f"v_mfma_f32_16x16x32_bf16 {v(acc(qt,dt),4)}, {v(a+4*dt,4)}, {v(b+4*qt,4)}, {v(acc(qt,dt),4)}" for dt, qt in od]
def weave(M, gaps):
    out = []
    for i, m in enumerate(M):
        out.append(m)
        if i < len(gaps): out.extend(gaps[i])
    for g in gaps[len(M):]: out.extend(g)
    return out
P2 = {0: 32, 1: 68}
AC2 = 104; PK = 184; PKU = 224
def a2(f, qt): return AC2 + (f*3+qt)*4 if f < 4 else [160,164,168,172,192,196][(f-4)*3+qt]
def w_reads(ks, st, own):
    a = P2[st]; R = []
    for f in range(6 if own else 4):
        for half in range(2):
            if f < 4: R.append(f"ds_read_b64_tr_b16 {v(a+4*f+2*half,2)}, v{VM} offset:{ks*8448+half*512+f*32}")
            else: R.append(f"ds_read_b64_tr_b16 {v(a+4*f+2*half,2)}, v{VU} offset:{(ks*4+half*2)*128+(f-4)*32}")
    B = [f"ds_read_b128 {v(a+24+4*qt,4)}, v{VO} offset:{qt*2048+ks*1024}" for qt in range(3)]
    return R[:2] + B + R[2:]
def w_mfma(st, own, first=False):
    a = P2[st]
    return [f"v_mfma_f32_16x16x32_bf16 {v(a2(f,qt),4)}, {v(a+4*f,4)}, {v(a+24+4*qt,4)}, {'0' if first else v(a2(f,qt),4)}"
            for f in range(6 if own else 4) for qt in range(3)]

def attention(lastq):
    L = []; bias = {}
    cur = [0]
    def A(x):
        bias[len(L)] = cur[0]; L.append(x)
    VQ, VP = 32, 124
    for x in lastq: A(x)
    for ks in range(4):
        for kt in range(3):
            for half in range(2):
                A(f"ds_read_b64 {v(KF+(kt*4+ks)*4+2*half,2)}, v{VK0+half} offset:{kt*4*KP+ks*64}")
    def qb(ks, qt): return ACC + qt*32 + ks*8
    def sp(i): return ACC + (i//4)*32 + (i%4)*8 + 4
    def S(kt, qt): return sp(qt*4 + kt)
    def PB(qt): return sp(qt*4 + 3)
    OODD = {0: 140, 1: KF, 2: KF+16}
    def O(dt, qt): return qb(dt//2, qt) if dt % 2 == 0 else OODD[qt] + (dt//2)*4
    m = [23, 24, 25]; t = [26, 27, 28]
    for qt in range(3):
        cur[0] = (2-qt)*cfg.bias
        for ks in range(4):
            r = qb(ks, qt)
            for j in range(4): A(f"v_cvt_pk_bf16_f32 v{r+j}, v{r+2*j}, v{r+2*j+1}")
        for ks in range(4):
            for kt in range(3):
                c = "0" if ks == 0 else v(S(kt,qt),4)
                A(f"v_mfma_f32_16x16x32_bf16 {v(S(kt,qt),4)}, {v(KF+(kt*4+ks)*4,4)}, {v(qb(ks,qt),4)}, {c}")
    vr = []; vregs = set()
    for dt in range(8):
        for x in (f"ds_read_b64_tr_b16 {v(VQ+4*dt,2)}, v{VV+dt}", f"ds_read_b64_tr_b16 {v(VQ+4*dt+2,2)}, v{VV+dt} offset:4096",
                  f"ds_read_b64_tr_b16 {v(VP+2*dt,2)}, v{VV+dt} offset:8192"):
            i = I(x); i.r = i.r | {('x','vl')}; vr.append(i); vregs |= i.w
    lr = I(f"ds_read_b32 v{VR}, v{VRA} offset:96"); lr.r = lr.r | {('v', S(0,0))}
    lc = I(f"v_cmp_eq_u32 vcc, 0, v{VR}")
    lb = I("s_cbranch_vccnz L_vls"); lb.text = "s_cbranch_vccnz L_vls\nL_vlg:"; lb.r = {('s','vcc')}; lb.w = {('x','vl')}
    kw = I(f"ds_write_b32 v{VDA}, v{VD} offset:48"); kw.r = kw.r | vregs | {('v', KF+i) for i in range(48)}; kw.w = {('x','kw')}
    kr = I(f"ds_read_b32 v{VR}, v{VRA} offset:64"); kr.r = kr.r | {('x','kw'), ('v', PB(0))}
    kc = I(f"v_cmp_eq_u32 vcc, 0, v{VR}")
    kb = I("s_cbranch_vccnz L_kvs"); kb.text = "s_cbranch_vccnz L_kvs\nL_kvg:"; kb.r = {('s','vcc')}; kb.w = {('x','bar2')}
    stores = {}
    D = []; defer = D.append
    for qt in range(3):
        cur[0] = (2-qt)*cfg.bias
        s = [S(kt,qt)+r for kt in range(3) for r in range(4)]
        M, T = m[qt], t[qt]
        A(f"v_max3_f32 v{M}, v{s[0]}, v{s[1]}, v{s[2]}"); A(f"v_max3_f32 v{T}, v{s[3]}, v{s[4]}, v{s[5]}")
        A(f"v_max3_f32 v{M}, v{M}, v{s[6]}, v{s[7]}"); A(f"v_max3_f32 v{T}, v{T}, v{s[8]}, v{s[9]}")
        A(f"v_max3_f32 v{M}, v{M}, v{s[10]}, v{s[11]}"); A(f"v_max_f32 v{M}, v{M}, v{T}")
        if qt == 0:
            if not cfg.vspread: A(lr); A(lc); A(lb)
            for x in vr: A(x)
            A(kw)
        for sw in ("v_permlane16_swap_b32", "v_permlane32_swap_b32"):
            A(f"v_mov_b32 v{T}, v{M}"); A(f"{sw} v{M}, v{T}"); A(f"v_max_f32 v{M}, v{M}, v{T}")
        A(f"v_mul_f32 v{M}, s51, v{M}")
        for x in s: A(f"v_fma_f32 v{x}, v{x}, s51, -v{M}")
        for x in s: A(f"v_exp_f32 v{x}, v{x}")
        A(f"v_add_f32 v{M}, v{s[0]}, v{s[1]}"); A(f"v_add_f32 v{T}, v{s[2]}, v{s[3]}")
        for i in range(4, 12, 2):
            A(f"v_add_f32 v{M}, v{M}, v{s[i]}"); A(f"v_add_f32 v{T}, v{T}, v{s[i+1]}")
        A(f"v_add_f32 v{M}, v{M}, v{T}")
        for sw in ("v_permlane16_swap_b32", "v_permlane32_swap_b32"):
            A(f"v_mov_b32 v{T}, v{M}"); A(f"{sw} v{M}, v{T}"); A(f"v_add_f32 v{M}, v{M}, v{T}")
        A(f"v_rcp_f32 v{M}, v{M}")
        for x in s: A(f"v_mul_f32 v{x}, v{x}, v{M}")
        for j in range(4): A(f"v_cvt_pk_bf16_f32 v{PB(qt)+j}, v{s[2*j]}, v{s[2*j+1]}")
        for j in range(2): A(f"v_cvt_pk_bf16_f32 v{S(2,qt)+j}, v{s[8+2*j]}, v{s[9+2*j]}")
        if qt == 0: A(kr); A(kc); A(kb)
        base = cur[0]
        def lo(dt):
            cur[0] = -3000 if (cfg.u0first and dt >= 4) else base
        for dt in range(8):
            lo(dt); i = I(f"v_mfma_f32_16x16x32_bf16 {v(O(dt,qt),4)}, {v(VQ+4*dt,4)}, {v(PB(qt),4)}, 0")
            (defer if (cfg.u0hard and dt >= 4) else A)(i)
        for dt in range(8):
            lo(dt); (defer if (cfg.u0hard and dt >= 4) else A)(f"v_mfma_f32_16x16x16_bf16 {v(O(dt,qt),4)}, {v(VP+2*dt,2)}, {v(S(2,qt),2)}, {v(O(dt,qt),4)}")
        for ks in range(4):
            lo(2*ks)
            r = qb(ks, qt); k = O(2*ks+1, qt)
            E = defer if (cfg.u0hard and ks >= 2) else A
            E(f"v_cvt_pk_bf16_f32 v{r}, v{r}, v{r+1}"); E(f"v_cvt_pk_bf16_f32 v{r+1}, v{r+2}, v{r+3}")
            E(f"v_cvt_pk_bf16_f32 v{r+2}, v{k}, v{k+1}"); E(f"v_cvt_pk_bf16_f32 v{r+3}, v{k+2}, v{k+3}")
            w = I(f"ds_write_b128 v{VOW}, {v(r,4)} offset:{(ks>>1)*12288+qt*2048+(ks&1)*1024}"); w.r = w.r | {('x','bar2')}
            E(w)
            stores[qt, ks] = f"buffer_store_dwordx4 {v(r,4)}, v{VOG}, {srd(SWS)}, s{54+(ks>>1)*2+(qt>>1)} offen offset:{(qt&1)*2048+(ks&1)*1024} sc1"
    cur[0] = 5000
    order = [(0,0),(0,1),(0,2),(0,3),(1,0),(1,1),(2,0),(2,1)]
    late = [(1,2),(1,3),(2,2),(2,3)]
    if cfg.u0first:
        order = [(0,0),(0,1),(1,0),(1,1),(2,0),(2,1)]; late = [(0,2),(0,3)] + late
    if not cfg.no_ostore:
        for k in order: A(stores[k])
    if D:
        first = True
        for x in D:
            x = x if isinstance(x, I) else I(x)
            if x.kind == 'mfma' and not x.srcC: x.r = x.r | {('v', PB(2)+3)}
            cur[0] = -3000; A(x)
    if cfg.sched: L = schedule(L, verbose=True, bias=bias)
    return L, ([] if cfg.no_ostore else [stores[k] for k in late])

def compute():
    L = []; A = L.append
    A("s_and_b32 s44, s7, 1"); A("s_lshr_b32 s45, s7, 1")
    A("v_and_b32 v23, 15, v0"); A("v_lshrrev_b32 v24, 4, v0"); A("v_bfe_u32 v25, v0, 2, 2")
    A("v_and_b32 v26, 3, v0"); A("v_and_b32 v27, 1, v24"); A("v_lshrrev_b32 v28, 1, v24"); A("v_lshlrev_b32 v26, 3, v26")
    A("v_lshl_add_u32 v29, v27, 2, v25")
    A("v_mul_u32_u24 v20, 1056, v29"); A("v_add_u32 v20, v20, v26")
    A("v_lshl_add_u32 v30, v28, 9, v20")
    A("s_lshl_b32 s46, s45, 8"); A(f"s_add_u32 s46, s46, {SLOT_C}"); A(f"v_add_u32 v{VA}, s46, v30")
    A("v_lshl_add_u32 v30, v28, 8, v20"); A("s_lshl_b32 s46, s45, 7"); A(f"v_add_u32 v{VM}, s46, v30"); A(f"v_mov_b32 v{VML}, v{VM}")
    A("v_lshl_add_u32 v30, v28, 7, v20"); A("s_lshl_b32 s46, s45, 6"); A(f"s_add_u32 s46, s46, {UB}"); A(f"v_add_u32 v{VU}, s46, v30")
    A("v_lshrrev_b32 v30, 1, v23"); A("v_xor_b32 v30, v30, v24"); A("v_lshlrev_b32 v30, 4, v30"); A("v_lshl_add_u32 v30, v23, 7, v30")
    A("s_mul_i32 s47, s44, 6144"); A(f"s_add_u32 s46, s47, {SLOT_C+QW}")
    A(f"v_add_u32 v{VB0}, s46, v30"); A("v_xor_b32 v30, 64, v30"); A(f"v_add_u32 v{VB1}, s46, v30")
    A("v_and_b32 v31, 3, v0")
    A(f"v_mul_u32_u24 v30, {KP}, v25"); A("v_lshl_add_u32 v30, v31, 8, v30"); A("v_lshl_add_u32 v30, v27, 3, v30")
    A(f"s_mul_i32 s46, s44, {KPB}"); A(f"s_add_u32 s46, s46, {KB}"); A("v_add_u32 v30, s46, v30")
    A("v_xor_b32 v31, v31, v28"); A(f"v_lshl_add_u32 v{VK0}, v31, 4, v30")
    A("v_xor_b32 v31, 2, v31"); A(f"v_lshl_add_u32 v{VK1}, v31, 4, v30")
    A("v_lshl_add_u32 v22, v24, 2, v25")
    A("v_lshl_add_u32 v30, v22, 8, v26")
    A(f"s_mul_i32 s46, s44, {VPB}"); A(f"s_add_u32 s46, s46, {VB}"); A("v_add_u32 v30, s46, v30")
    for dt in range(8):
        A(f"v_xor_b32 v31, {dt}, v29"); A(f"v_lshl_add_u32 v{VV+dt}, v31, 5, v30")
    A(f"v_lshlrev_b32 v{VL16}, 4, v0")
    A("s_mul_i32 s46, s45, 24576"); A("s_add_u32 s46, s46, s47")
    A(f"v_add_u32 v{VOG}, s46, v{VL16}"); A(f"v_add_u32 v{VOW}, {OB}, v{VOG}")
    A(f"s_add_u32 s46, s47, {OB}"); A(f"v_add_u32 v{VO}, s46, v{VL16}")
    for i in range(48): A(f"v_mov_b64 {v(ACC+2*i,2)}, 0")
    A("v_mov_b32 v22, 0")
    A(f"v_and_b32 v{VRA}, 7, v0"); A(f"v_lshlrev_b32 v{VRA}, 2, v{VRA}"); A(f"v_add_u32 v{VRA}, {SYNC}, v{VRA}")
    A("s_lshl_b32 s46, s7, 2"); A(f"s_add_u32 s46, s46, {SYNC+16}"); A(f"v_mov_b32 v{VDA}, s46"); A(f"v_mov_b32 v{VD}, 64")
    A("s_and_b32 s46, s2, 7"); A("s_lshl3_add_u32 s46, s46, s5")
    A("s_lshl2_add_u32 s46, s46, s71"); A("s_mul_i32 s54, s46, 49152")
    A("s_lshl_b32 s52, s46, 8"); A("s_lshl3_add_u32 s52, s7, s52"); A(f"s_add_u32 s52, s52, {FL1}")
    A("s_add_u32 s55, s54, 4096"); A("s_add_u32 s56, s54, 12288"); A("s_add_u32 s57, s54, 16384")
    A("s_lshl3_add_u32 s47, s4, s5")
    A("s_lshl2_add_u32 s46, s47, s71"); A("s_lshl2_add_u32 s46, s46, s7")
    A("s_lshl_b32 s53, s46, 7"); A("s_lshl3_add_u32 s53, s3, s53"); A(f"s_add_u32 s53, s53, {FL2}")
    A("s_lshl2_add_u32 s46, s46, s3"); A("s_mul_i32 s60, s46, 6144"); A(f"s_add_u32 s60, s60, {PART}")
    A("s_lshl4_add_u32 s46, s47, s6"); A("s_lshl2_add_u32 s46, s46, s7")
    A("s_lshl_b32 s86, s46, 3"); A(f"s_add_u32 s86, s86, {FL3}")
    A("s_mul_i32 s87, s46, 3072"); A(f"s_add_u32 s87, s87, {PART3}")
    A("s_mov_b32 s51, 0x3e0293ee")
    A(f"s_mov_b32 s48, {SLOT_C}"); A("s_mov_b32 s49, 9")
    A(f"s_mov_b32 s58, {nib(MPOS) & 0xffffffff}"); A(f"s_mov_b32 s59, {nib(MPOS) >> 32}"); A(f"s_mov_b32 s61, {-4*OSL & 0xffffffff}"); A(f"s_mov_b32 s50, {OSL}")
    A("s_mov_b32 s85, 0"); A("s_mov_b32 s88, 1")
    A("s_waitcnt lgkmcnt(0)")
    mk_srd(A, SWS, 42, WS); mk_srd(A, SDBG, 82, 256)
    A("s_add_u32 s83, s52, 128")
    A("s_add_u32 s46, s2, s7"); A("s_cmp_lg_u32 s46, 0"); A("s_cbranch_scc1 L_nn")
    A("s_memrealtime s[46:47]"); A("s_waitcnt lgkmcnt(0)"); A("s_or_b32 s46, s46, 1")
    A(f"v_mov_b32 v{VN}, s46"); A(f"v_mov_b32 v{VN+1}, s47")
    A("s_mov_b64 exec, 1")
    A(f"buffer_store_dwordx2 {v(VN,2)}, v22, {srd(SDBG)}, 0 offen sc1")
    A("s_mov_b64 exec, -1")
    A("L_nn:")
    if cfg.prio: A(f"s_setprio {cfg.prio}")
    bar(A)
    L.extend(rt(0))
    L.extend(q_reads(0, 0))
    A("s_branch L_q_h1")
    out = fix(L)
    r = q_reads(0, 0)
    g2 = [[f"v_add_u32 v{VA}, s47, v{VA}"], [r[0], f"v_add_u32 v{VB0}, s47, v{VB0}"], [r[1], f"v_add_u32 v{VB1}, s47, v{VB1}"]] + [[x] for x in r[2:]]
    nm = (lambda M: ["s_nop 2"]*len(M)) if cfg.nomfmaq else (lambda M: M)
    H2 = ["L_q_top:"] + weave(nm(q_mfma(1)), g2)
    r = q_reads(1, 1)
    g1 = [[x] for x in r] + [[f"s_add_u32 s46, s48, {QS}", f"s_cmp_eq_u32 s46, {LDS_Q_END}"], ["s_cselect_b32 s46, 0, s46", "s_sub_u32 s47, s46, s48"],
                             ["s_mov_b32 s48, s46", "s_sub_u32 s49, s49, 1"], [] if cfg.prof else ["s_cmp_lg_u32 s49, 0"]]
    H1 = ["L_q_h1:"] + weave(nm(q_mfma(0)), g1)
    tail = ["s_waitcnt lgkmcnt(0)"] + L_(bar) + (["s_cmp_lg_u32 s49, 0"] if cfg.prof else []) + ["s_cbranch_scc1 L_q_top"]
    L = H2 + H1 + tail
    L += rt(1) + [f"buffer_load_dwordx2 {v(VN,2)}, v22, {srd(SDBG)}, 0 offen sc1"]
    att, late = attention(q_mfma(1))
    L += att + rt(2)
    L += L_(stamp, False)
    L += ["s_mov_b32 s48, 0", "s_mov_b32 s49, 0", "s_waitcnt lgkmcnt(0)", f"ds_write_b32 v{VDA}, v{VD}", f"v_add_u32 v{VDA}, 16, v{VDA}", f"v_mov_b32 v{VD}, 0",
          f"s_mov_b32 s89, {cfg.spin}", "L_p0:", f"ds_read_b32 v{VR}, v{VRA}", "s_waitcnt lgkmcnt(0)", f"v_cmp_ge_u32 vcc, s49, v{VR}",
          "s_sub_u32 s89, s89, 1", "s_cbranch_scc1 L_p0x", "s_cbranch_vccnz L_p0", "L_p0x:"]
    L += L_(stamp, False)
    L += w_reads(0, 0, True)
    salu = [["s_lshr_b64 s[58:59], s[58:59], 4"], ["s_and_b32 s46, s58, 15"], [f"s_mul_i32 s46, s46, {MSL}"], ["s_cmp_eq_u32 s48, 3"], ["s_cselect_b32 s47, s61, s50"],
            ["s_add_u32 s48, s48, 1"], ["s_cmp_eq_u32 s48, 5"], ["s_cselect_b32 s48, 0, s48"], ["s_add_u32 s49, s49, 1"]]
    stubs = []
    def chk(g, i, tag):
        g[i] += ["s_getreg_b32 s84, hwreg(HW_REG_IB_STS, 0, 4)"]
        g[i+1] += ["s_cmp_le_i32 s84, s85"]
        g[i+2] += [f"s_cbranch_scc1 L_st{tag}", f"L_bk{tag}:"]
        stubs.extend([f"L_st{tag}:", "s_call_b64 s[94:95], L_send", f"s_branch L_bk{tag}"])
    def h1(own, first=False, extra=[], lim=None):
        r = w_reads(1, 1, own); M = w_mfma(0, own, first)
        n = len(M)
        k = max(5, len(r) - 6)
        r = r[:k] + [f"ds_read_b32 v{VR}, v{VRA}"] + r[k:]
        g = [([r[i]] if i < len(r) else []) + (salu[i] if i < len(salu) else []) for i in range(n)]
        for i, e in enumerate(extra): g[min(n-1, i // 2 + 2)].append(e)
        if own: chk(g, 11, "b%d" % first)
        if extra: g[n-1] += ["s_or_b32 s88, s88, 4", "s_mov_b32 s85, 0"]
        g[n-2].append(f"v_cmp_ge_u32 vcc, s49, v{VR}")
        if lim: g[n-1].append(f"s_cmp_lt_u32 s49, {lim}")
        return weave(M, g)
    def h2(own, nown, n):
        r = w_reads(0, 0, nown); M = w_mfma(1, own)
        ad = [f"v_add_u32 v{VM}, s46, v{VML}", f"v_add_u32 v{VO}, s47, v{VO}"] + ([f"v_add_u32 v{VU}, {USL}, v{VU}"] if nown else []) + [f"v_add_u32 v{VD}, 1, v{VD}"]
        g = [([r[i-1]] if 1 <= i <= len(r) else []) + ([ad[i]] if i < len(ad) else []) for i in range(len(M))]
        g[-1].append(f"ds_write_b32 v{VDA}, v{VD}")
        g[0] += [f"s_cbranch_vccnz L_spin{n}", f"L_go{n}:"]
        chk(g, 4, f"a{n}")
        return weave(M, g)
    def top(n): return L_(stamp, False) + (["s_lshl_b64 s[96:97], s[96:97], 4"] if cfg.prof else [])
    def sig(so):
        if cfg.ssig: return [f"v_readfirstlane_b32 s92, v{VN}", f"v_readfirstlane_b32 s93, v{VN+1}", "s_nop 3", f"s_atomic_swap_x2 s[92:93], s[28:29], s{so}"]
        return ["s_mov_b64 exec, 1", f"buffer_store_dwordx2 {v(VN,2)}, v22, {srd(SWS)}, s{so} offen sc1", "s_mov_b64 exec, -1"]
    def ts(r): return [] if not cfg.prof else [f"s_mov_b32 s{r}, s64"]
    def send():
        F = ["L_send:", "s_waitcnt vmcnt(0)"]
        if not cfg.nosync:
            F += [f"s_mov_b32 s89, {cfg.spin}", "L_fn:", f"v_readfirstlane_b32 s92, v{VN}", f"v_readfirstlane_b32 s93, v{VN+1}", "s_sub_u32 s89, s89, 1", "s_cbranch_scc1 L_fg",
                  "s_cmp_lg_u32 s92, 0", "s_cbranch_scc1 L_fg",
                  f"buffer_load_dwordx2 {v(VN,2)}, v22, {srd(SDBG)}, 0 offen sc1", "s_waitcnt vmcnt(0)", "s_branch L_fn", "L_fg:"]
        F += ["s_bitcmp1_b32 s88, 0", "s_cbranch_scc0 L_s1", "s_atomic_swap_x2 s[92:93], s[28:29], s52"] + late + ["s_xor_b32 s88, s88, 3"] + ts(34) + ["s_setpc_b64 s[94:95]", "L_s1:"]
        F += ["s_bitcmp1_b32 s88, 1", "s_cbranch_scc0 L_s2", "s_atomic_swap_x2 s[92:93], s[28:29], s83"] + ts(36) + ["L_s2:"]
        F += ["s_bitcmp1_b32 s88, 2", "s_cbranch_scc0 L_s3", "s_atomic_swap_x2 s[92:93], s[28:29], s86"] + ts(38) + ["L_s3:"]
        F += ["s_mov_b32 s88, 0", "s_mov_b32 s85, -1"] + ["s_setpc_b64 s[94:95]"]
        return F
    def flagblk(n):
        F = [f"L_spin{n}:"] + (["s_ff1_i32_b64 s98, vcc", "s_add_u32 s98, s98, 1", "s_or_b32 s96, s96, s98"] if cfg.prof else []) + \
             [f"s_mov_b32 s82, {cfg.spin}", f"L_sp{n}:", "s_cmp_eq_u32 s88, 0", f"s_cbranch_scc1 L_sq{n}", "s_call_b64 s[94:95], L_send", f"L_sq{n}:",
              f"ds_read_b32 v{VR}, v{VRA}", "s_waitcnt lgkmcnt(0)", f"v_cmp_ge_u32 vcc, s49, v{VR}",
              "s_sub_u32 s82, s82, 1", f"s_cbranch_scc1 L_go{n}", f"s_cbranch_vccnz L_sp{n}", f"s_branch L_go{n}"]
        return F
    uepi = []
    for qt in range(3):
        a, b = a2(4, qt), a2(5, qt)
        uepi += [f"v_cvt_pk_bf16_f32 v{PKU+4*qt}, v{a}, v{a+1}", f"v_cvt_pk_bf16_f32 v{PKU+4*qt+1}, v{a+2}, v{a+3}",
                 f"v_cvt_pk_bf16_f32 v{PKU+4*qt+2}, v{b}, v{b+1}", f"v_cvt_pk_bf16_f32 v{PKU+4*qt+3}, v{b+2}, v{b+3}",
                 f"buffer_store_dwordx4 {v(PKU+4*qt,4)}, v{VL16}, {srd(SWS)}, s87 offen offset:{qt*1024} sc1"]
    L += h1(True, True)
    L += ["L_o_top:"] + top(0) + h2(True, True, 0) + h1(True, lim=4) + ["s_cbranch_scc1 L_o_top"]
    L += rt(3) + top(1) + h2(True, False, 1) + h1(False, extra=uepi)
    L += ["L_r_top:"] + top(2) + h2(False, False, 2) + h1(False, lim=16) + ["s_cbranch_scc1 L_r_top"]
    L += L_(stamp, False)
    a = P2[1]
    def fin(own):
        F = []
        for i in range(6):
            qt = i >> 1
            for f in (2*(i&1), 2*(i&1)+1):
                F.append(f"v_mfma_f32_16x16x32_bf16 {v(a2(f,qt),4)}, {v(a+4*f,4)}, {v(a+24+4*qt,4)}, {v(a2(f,qt),4)}")
        for i in range(6):
            x, y = a2(2*(i&1), i>>1), a2(2*(i&1)+1, i>>1)
            F += [f"v_cvt_pk_bf16_f32 v{PK+4*i}, v{x}, v{x+1}", f"v_cvt_pk_bf16_f32 v{PK+4*i+1}, v{x+2}, v{x+3}",
                  f"v_cvt_pk_bf16_f32 v{PK+4*i+2}, v{y}, v{y+1}", f"v_cvt_pk_bf16_f32 v{PK+4*i+3}, v{y+2}, v{y+3}"]
            if own: F.append(f"ds_write_b128 v{VL16}, {v(PK+4*i,4)} offset:{i*1024}")
            else: F.append(f"buffer_store_dwordx4 {v(PK+4*i,4)}, v{VL16}, {srd(SWS)}, s{60 + (i>>2)} offen offset:{(i&3)*1024} sc1")
        return schedule(F)
    L += ["L_e0:", "s_cmp_eq_u32 s88, 0", "s_cbranch_scc1 L_e1", "s_call_b64 s[94:95], L_send", "s_branch L_e0", "L_e1:"]
    L += rt(4) + ["s_waitcnt lgkmcnt(0)", "s_add_u32 s61, s60, 4096", "s_cmp_eq_u32 s7, s3", "s_cbranch_scc1 L_own"]
    L += fin(False) + L_(stamp) + ["s_waitcnt vmcnt(0)", "L_own2:"] + L_(stamp)
    L += sig(53)
    if cfg.prof:
        L += ["s_waitcnt lgkmcnt(0)"]
        L += ["s_sub_u32 s34, s34, s66", "s_sub_u32 s36, s36, s66", "s_sub_u32 s38, s38, s66", f"v_writelane_b32 v{PV}, s34, 58", f"v_writelane_b32 v{PV}, s36, 59", f"v_writelane_b32 v{PV}, s38, 60", f"v_writelane_b32 v{PV}, 0, 48"]
    dump_stamps(L.append)
    L += ["s_endpgm"]
    out += fix(L)
    out += fix(["L_own:", f"v_add_u32 v{VL16}, {LOWN}, v{VL16}", f"v_mov_b32 v{VDA}, {SYNC+48}"] + fin(True) + ["s_waitcnt lgkmcnt(0)", f"ds_write_b32 v{VDA}, v{VD}"] + L_(stamp) + ["s_branch L_own2"])
    for n in range(3): out += fix(flagblk(n))
    out += fix(send()) + fix(stubs)
    out += fix(["L_kvs:", f"s_mov_b32 s89, {cfg.spin}", "L_kvs2:", f"ds_read_b32 v{VR}, v{VRA} offset:64", "s_waitcnt lgkmcnt(0)", f"v_cmp_eq_u32 vcc, 0, v{VR}",
                "s_sub_u32 s89, s89, 1", "s_cbranch_scc1 L_kvg", "s_cbranch_vccnz L_kvs2", "s_branch L_kvg"])
    if not cfg.vspread: out += fix(["L_vls:", f"s_mov_b32 s89, {cfg.spin}", "L_vls2:", f"ds_read_b32 v{VR}, v{VRA} offset:96", "s_waitcnt lgkmcnt(0)", f"v_cmp_eq_u32 vcc, 0, v{VR}",
                "s_sub_u32 s89, s89, 1", "s_cbranch_scc1 L_vlg", "s_cbranch_vccnz L_vls2", "s_branch L_vlg"])
    return out

def main_kernel():
    ins = fix(L_(prologue)) + compute() + loader() + [I("L_end:")]
    return text(ins)
def build(path):
    hdr = open("concat_heads__gqa_block_cached__gqa_block_cached__near_ridge.s.ref").read().split("; Override launch")[0]
    s = hdr + f"; @launch grid=(256,1,1) block=(512,1,1) lds=163840\n"
    s += '.amdgcn_target "amdgcn-amd-amdhsa--gfx950"\n'
    s += mkkernel(KN, main_kernel(), vgpr=256, sgpr=102, accum=256)
    open(path, "w").write(s)
if __name__ == "__main__":
    out = sys.argv[1]
    for a in sys.argv[2:]:
        k, val = a.split("=")
        cur = getattr(cfg, k)
        setattr(cfg, k, (val == "1") if isinstance(cur, bool) else type(cur)(val.replace("_"," ") if isinstance(cur,str) else val))
    build(out)
```
